```python
import torch

def _softmax(x, axis=-1):
    return torch.softmax(x, dim=axis)
def _gelu(x):
    return torch.nn.functional.gelu(x, approximate="tanh")
def _silu(x):
    return torch.nn.functional.silu(x)
def _sigmoid(x):
    return torch.sigmoid(x)
def _layernorm(x, axis=-1, eps=1e-5):
    m = x.mean(dim=axis, keepdim=True)
    v = x.var(dim=axis, keepdim=True, unbiased=False)
    return (x - m) / torch.sqrt(v + eps)
def _scatter_add(tgt, idx, src, axis=0):
    return tgt.clone().index_add_(axis, idx, src)
def _segment_sum(src, seg, n):
    out = torch.zeros((n,) + src.shape[1:], dtype=src.dtype)
    return out.index_add_(0, seg, src)
def _pad(x, pw):
    flat = tuple(v for pair in reversed(pw) for v in pair)
    return torch.nn.functional.pad(x, flat)

kernel_name = 'interleave_layers__sliding_block_cached__dense_activation_silu__decode'

def setup_inputs():

    _w = (lambda a: (lambda t: t.to(torch.bfloat16) if t.is_floating_point() else t)(torch.as_tensor(a)))
    def _A_setup():
        B, Sq, D = 8, 1, 1024
        Hq, Hkv, Sk, Dh = 32, 4, 4096, 128
        assert Hq % Hkv == 0, (Hq, Hkv)
        return {
            "x": _w((lambda *s: torch.randn(*s, dtype=torch.bfloat16) * 0.05)(B, Sq, D)),
            "k_cache": _w((lambda *s: torch.randn(*s, dtype=torch.bfloat16) * 0.8)(B, Hkv, Sk, Dh)),
            "v_cache": _w((lambda *s: torch.randn(*s, dtype=torch.bfloat16) * 1.6)(B, Hkv, Sk, Dh)),
            "wq": _w((lambda *s: torch.randn(*s, dtype=torch.bfloat16) * 0.8)(D, Hq * Dh) * (D ** -0.5)),
            "wo": _w((lambda *s: torch.randn(*s, dtype=torch.bfloat16) * 1.6)(Hq * Dh, D) * ((Hq * Dh) ** -0.5)),
        }
    _A_in = _A_setup()

    def _B_setup():
        B, S, D, F = 8, 1, 1024, 3584
        return {
            "x": _w((lambda *s: torch.randn(*s, dtype=torch.bfloat16) * 0.05)(B, S, D)),
            "w1": _w((lambda *s: torch.randn(*s, dtype=torch.bfloat16) * 1.6)(D, F) * (D ** -0.5)),
            "w2": _w((lambda *s: torch.randn(*s, dtype=torch.bfloat16) * 0.2)(F, D) * (F ** -0.5)),
        }
    _B_in = _B_setup()

    return {
        "A_x": _A_in["x"],
        "A_k_cache": _A_in["k_cache"],
        "A_v_cache": _A_in["v_cache"],
        "A_wq": _A_in["wq"],
        "A_wo": _A_in["wo"],
        "B_x": _B_in["x"],
        "B_w1": _B_in["w1"],
        "B_w2": _B_in["w2"],
    }

def reference(A_x, A_k_cache, A_v_cache, A_wq, A_wo, B_x, B_w1, B_w2):
    def _A_ref(x, k_cache, v_cache, wq, wo):
        B, Sq, D = x.shape
        Hq, Dh = 32, 128
        Hkv, Sk = k_cache.shape[1], k_cache.shape[2]
        W = min(4096, max(256, Sk // 4))
        rep = Hq // Hkv
        q = (lambda x, *d: x.permute(*d))((x @ wq).reshape(B, Sq, Hq, Dh), 0, 2, 1, 3)
        k = (lambda x, n, axis: torch.repeat_interleave(x, n, dim=axis))(k_cache[:, :, Sk - W:, :], rep, axis=1)
        v = (lambda x, n, axis: torch.repeat_interleave(x, n, dim=axis))(v_cache[:, :, Sk - W:, :], rep, axis=1)
        scores = torch.einsum("bhqd,bhkd->bhqk", q, k) * (Dh ** -0.5)
        p = _softmax(scores, axis=-1)
        o = torch.einsum("bhqk,bhkd->bhqd", p, v)
        return (lambda x, *d: x.permute(*d))(o, 0, 2, 1, 3).reshape(B, Sq, Hq * Dh) @ wo

    def _B_ref(x, w1, w2):
        h = torch.einsum("bsd,df->bsf", x, w1)
        h = _silu(h)
        out = torch.einsum("bsf,fd->bsd", h, w2)
        return out

    x = A_x
    x = x + _A_ref(_layernorm(x, axis=-1), A_k_cache, A_v_cache, A_wq, A_wo)
    x = x + _B_ref(_layernorm(x, axis=-1), B_w1, B_w2)
    x = x + _A_ref(_layernorm(x, axis=-1), A_k_cache, A_v_cache, A_wq, A_wo)
    x = x + _B_ref(_layernorm(x, axis=-1), B_w1, B_w2)
    return x
```

```python
import sys
NAME="interleave_layers__sliding_block_cached__dense_activation_silu__decode"
opts=dict(a.split('=') for a in sys.argv[2:])
STAMP=int(opts.get('stamp',0))
STAGE=int(opts.get('stage',0))
NT=opts.get('nt','1')=='1'
out=[]
def E(s): out.append("    "+s)
def L(s): out.append(s+":")
def C(s): out.append("    ; "+s)
def nop(n): E(f"s_nop {n-1}")
LS=0x300000
QP,AP,OP,F1P,F2P,F1CS,QST,F1ST,AST=0,0x90000,0x110000,0x190000,0x210000,0x290000,0x2A0000,0x2A8000,0x2B0000
STB_WS=0x600000
WS_REC=0x800000
OPB=[0,4096,8192,12288,16384]; PB=20480; SMB=24576; BOUNCE=25600; BSZ=8704
LDS=61440
WS="s[8:11]"; SWQ="s[12:15]"; SK="s[16:19]"; SV="s[20:23]"; SWO="s[24:27]"; SW1="s[28:31]"; SW2="s[32:35]"
SX="s[36:39]"; SOUT="s[40:43]"; SDBG="s[44:47]"
sW,sLO,sHI,sLAY,sBUD,sT,sT2,sETA="s48","s49","s50","s51","s52","s53","s54","s55"
sA1,sA2="s56","s57"
offs=["pQP","pAP","pAST","pOP","pF1","pF2","pQST","pF1ST","gF2","gOP","gQP","gQCS","gQST","gAP","gAST","gF1","gF1CS","gF1ST"]
S={n:f"s{58+i}" for i,n in enumerate(offs)}
sC0,sC1="s76","s77"; sP="s[78:79]"; sP0,sP1="s78","s79"
STS=80
nst=[0]
def stamp(i):
    if STAMP:
        E("s_memrealtime s[100:101]"); E("s_waitcnt lgkmcnt(0)")
        E(f"s_cmp_eq_u32 {sLAY}, 0"); E(f"s_cselect_b32 s{STS+i}, s100, s{STS+i}"); E(f"s_cselect_b32 s{STS+10+i}, s{STS+10+i}, s100")
def setexec(lo,hi):
    E(f"s_mov_b32 exec_lo, {lo:#x}"); E(f"s_mov_b32 exec_hi, {hi:#x}")
def fullexec(): E("s_mov_b64 exec, -1")
def vr(a,n): return f"v[{a}:{a+n-1}]"
def mfma(d,a,b,c): E(f"v_mfma_f32_16x16x32_bf16 {vr(d,4)}, {vr(a,4)}, {vr(b,4)}, {('0' if c is None else vr(c,4))}")
def srd(s,ptr,n):
    b=int(s[2:s.index(':')])
    E(f"s_mov_b32 s{b}, s{ptr}"); E(f"s_and_b32 s{b+1}, s{ptr+1}, 0xffff"); E(f"s_mov_b32 s{b+2}, {n:#x}"); E(f"s_mov_b32 s{b+3}, 0x20000")
vL16,vAQ,vAL,vLANE,vN,vG=255,254,253,252,251,250
hdr=open(f"cdna_kernels/{NAME}.s.ref").read().split("; Override")[0]
out.append(hdr.rstrip())
out.append(f"; @launch grid=(256,1,1) block=(512,1,1) lds={LDS}")
out.append('.amdgcn_target "amdgcn-amd-amdhsa--gfx950"\n.text\n.globl %s_kernel\n.p2align 8\n.type %s_kernel,@function\n%s_kernel:'%(NAME,NAME,NAME))
E("s_cmp_ge_u32 s2, 256"); E("s_cbranch_scc1 L_end")
E("s_load_dwordx16 s[80:95], s[0:1], 0")
E("s_load_dwordx4 s[96:99], s[0:1], 64")
E("s_load_dwordx2 s[100:101], s[0:1], 80")
E("v_lshrrev_b32 v1, 6, v0"); E(f"v_and_b32 v{vLANE}, 63, v0")
E(f"s_and_b32 {sLO}, s2, 7"); E(f"v_readfirstlane_b32 s3, v1"); E(f"s_lshr_b32 {sHI}, s2, 3")
E(f"s_and_b32 {sW}, s3, 3")
E(f"v_lshlrev_b32 v{vL16}, 4, v{vLANE}"); E(f"v_and_b32 v{vN}, 15, v{vLANE}"); E(f"v_lshrrev_b32 v{vG}, 4, v{vLANE}")
E(f"s_lshr_b32 s4, {sHI}, 3")
E(f"s_and_b32 s5, {sHI}, 7")
E(f"s_lshl_b32 {sETA}, s4, 3"); E(f"s_add_u32 {sETA}, {sETA}, {sLO}")
E(f"s_cmp_lt_u32 {sHI}, 28"); E(f"s_cselect_b32 {sA1}, 1, 0")
E(f"s_cmp_lt_u32 {sETA}, 28"); E(f"s_cselect_b32 {sA2}, 1, 0")
E(f"s_mov_b32 {sLAY}, 0"); E(f"s_mov_b32 {sBUD}, 40000")
E("s_waitcnt lgkmcnt(0)")
srd(SWQ,86,1024*4096*2)
E("s_cmp_ge_u32 s3, 4"); E("s_cbranch_scc1 L_common")
def tile_voff(v,stride):
    E(f"v_lshrrev_b32 v{v}, 2, v{vLANE}"); E(f"v_mul_u32_u24 v{v}, {stride}, v{v}")
    E(f"v_and_b32 v{v+1}, 3, v{vLANE}"); E(f"v_lshl_add_u32 v{v}, v{v+1}, 4, v{v}")
    E(f"s_lshl_b32 {sT2}, {sW}, 6"); E(f"v_add_u32 v{v}, {sT2}, v{v}")
def tile_loads(dst,v,srdn,step):
    for i in range(8):
        E(f"buffer_load_dwordx4 {vr(dst+4*i,4)}, v{v}, {srdn}, {sT} offen"+(" nt" if NT else ""))
        if i<7: E(f"s_add_u32 {sT}, {sT}, {step}")
RWQ,RK,RV,RWO,RW1,RW2,RB,RD=0,32,64,96,128,160,192,208
def ld_wq():
    tile_voff(RD,8192); E(f"s_lshl_b32 {sT}, {sLO}, 20"); E(f"s_lshl_b32 {sT2}, {sHI}, 8"); E(f"s_add_u32 {sT}, {sT}, {sT2}")
    tile_loads(RWQ,RD,SWQ,16*8192)
ld_wq()
L("L_common")
srd(WS,100,WS_REC); srd(SK,82,8*4*4096*128*2); srd(SV,84,8*4*4096*128*2); srd(SWO,88,4096*1024*2)
srd(SW1,92,1024*3584*2); srd(SW2,94,3584*1024*2); srd(SX,80,16384); srd(SOUT,96,16384); srd(SDBG,98,256)
def lin(dst,base,terms):
    E(f"s_mov_b32 {dst}, {base:#x}")
    for r,sh in terms:
        E(f"s_lshl_b32 {sT2}, {r}, {sh}"); E(f"s_add_u32 {dst}, {dst}, {sT2}")
E("s_cmp_ge_u32 s3, 4"); E("s_cbranch_scc1 L_common2")
def kv_base():
    lin(sT,3072*256,[(sLO,22),("s4",20),("s5",15)])
def ld_k():
    kv_base(); E(f"s_lshl_b32 {sT2}, {sW}, 13"); E(f"s_add_u32 {sT}, {sT}, {sT2}")
    tile_loads(RK,vL16,SK,1024)
def ld_v():
    tile_voff(RD+2,256); kv_base(); tile_loads(RV,RD+2,SV,16*256)
def ld_wo():
    tile_voff(RD+4,2048); lin(sT,0,[(sETA,18),("s5",8)]); tile_loads(RWO,RD+4,SWO,16*2048)
def inact(flag,v):
    E(f"s_cmp_eq_u32 {flag}, 1"); E(f"s_cselect_b32 {sT}, {sT}, 0"); E(f"s_cselect_b32 {sT2}, 0, 0x40000000"); E(f"v_or_b32 v{v}, {sT2}, v{v}")
def ld_w1():
    tile_voff(RD+6,7168); E(f"s_mul_i32 {sT}, {sLO}, {128*7168}"); E(f"s_lshl_b32 {sT2}, {sHI}, 8"); E(f"s_add_u32 {sT}, {sT}, {sT2}")
    inact(sA1,RD+6); tile_loads(RW1,RD+6,SW1,16*7168)
def ld_w2():
    tile_voff(RD+4,2048); lin(sT,0,[(sETA,18),("s5",8)]); inact(sA2,RD+4); tile_loads(RW2,RD+4,SW2,16*2048)
sched={0:[[ld_k,ld_v,ld_wo,ld_w1,ld_w2],[],[],[],[]],
       1:[[ld_k,ld_v],[ld_wo],[ld_w1],[ld_w2],[]],
       2:[[ld_k],[ld_v],[ld_wo],[ld_w1],[ld_w2]],
       3:[[ld_k,ld_v],[ld_wo,ld_w1],[ld_w2],[],[]]}[STAGE]
order=['wq']; names={ld_k:'k',ld_v:'v',ld_wo:'wo',ld_w1:'w1',ld_w2:'w2'}
q=['wq']*8
def issue(pt):
    for f in sched[pt]:
        f(); q.extend([names[f]]*8)
def wait_for(nm):
    last=max(i for i,x in enumerate(q) if x==nm); n=len(q)-1-last
    E(f"s_waitcnt vmcnt({n})")
issue(0)
L("L_common2")
lin(S['pQP'],QP,[(sHI,11),(sLO,8)]); lin(S['pAP'],AP,[("s4",14),(sLO,11),("s5",8)]); lin(S['pAST'],AST,[("s4",9),(sLO,6),("s5",3)])
lin(S['pOP'],OP,[("s5",16),(sETA,11)]); lin(S['pF1'],F1P,[("s2",11)]); lin(S['pF2'],F2P,[("s5",16),(sETA,11)])
lin(S['pQST'],QST,[("s2",7)]); lin(S['pF1ST'],F1ST,[("s2",7)])
E(f"s_lshl_b32 {sT}, {sW}, 6"); E(f"v_lshl_add_u32 v249, v{vG}, 4, {sT}")
E(f"v_lshl_add_u32 v{vAQ}, v{vN}, 16, v249")
E(f"s_lshl_b32 {sT}, {sW}, 9"); E(f"v_lshl_add_u32 v{vAL}, v{vG}, 7, {sT}"); E(f"v_lshl_add_u32 v{vAL}, v{vN}, 4, v{vAL}")
E(f"s_mul_i32 {sT}, s2, 1792"); E(f"s_sub_u32 {sT}, {F1CS-F1P:#x}, {sT}")
setexec(0x01000100,0x01000100); E(f"v_add_u32 v{vAL}, {sT}, v249"); fullexec()
if STAMP:
    for i in range(20): E(f"s_mov_b32 s{STS+i}, 0")
stamp(0)
E("s_cmp_ge_u32 s3, 4"); E("s_cbranch_scc1 L_comm")
M8=(0x00FF00FF,0x00FF00FF); M9=(0x01FF01FF,0x01FF01FF)
def bump(keys):
    for k in keys: E(f"s_add_u32 {S[k]}, {S[k]}, {LS:#x}")
def l0only(tag):
    E(f"s_cmp_lg_u32 {sLAY}, 0"); E(f"s_cbranch_scc1 L_skip_{tag}")
def bounce(nm,R,natural):
    t=RD+8
    E(f"s_mul_i32 {sT}, {sW}, {BSZ}"); E(f"s_add_u32 {sT}, {sT}, {BOUNCE}")
    E(f"v_add_u32 v{t}, {sT}, v{vL16}")
    E(f"v_lshrrev_b32 v{t+1}, 2, v{vN}"); E(f"v_lshl_add_u32 v{t+1}, v{vG}, {3 if natural else 2}, v{t+1}")
    E(f"v_lshlrev_b32 v{t+1}, 6, v{t+1}"); E(f"v_and_b32 v{t+2}, 3, v{vLANE}"); E(f"v_lshl_add_u32 v{t+1}, v{t+2}, 4, v{t+1}")
    E(f"v_add_u32 v{t+1}, {sT}, v{t+1}")
    wait_for(nm)
    for i in range(8): E(f"ds_write_b128 v{t}, {vr(R+4*i,4)} offset:{i*1024}")
    E("s_waitcnt lgkmcnt(0)")
    for tt in range(2):
        for k in range(4):
            for u in range(2):
                E(f"ds_read_b64_tr_b16 {vr(R+16*tt+4*k+2*u,2)}, v{t+1} offset:{k*2048+u*(256 if natural else 1024)+8*tt}")
    E("s_waitcnt lgkmcnt(0)")
def bounce_k():
    t=RD+8
    E(f"s_mul_i32 {sT}, {sW}, {BSZ}"); E(f"s_add_u32 {sT}, {sT}, {BOUNCE}")
    E(f"v_mul_u32_u24 v{t}, 272, v{vG}"); E(f"v_lshl_add_u32 v{t}, v{vN}, 4, v{t}"); E(f"v_add_u32 v{t}, {sT}, v{t}")
    E(f"v_mul_u32_u24 v{t+1}, 272, v{vN}"); E(f"v_lshl_add_u32 v{t+1}, v{vG}, 4, v{t+1}"); E(f"v_add_u32 v{t+1}, {sT}, v{t+1}")
    wait_for('k')
    for i in range(8): E(f"ds_write_b128 v{t}, {vr(RK+4*i,4)} offset:{i*1088}")
    E("s_waitcnt lgkmcnt(0)")
    for tt in range(2):
        for k in range(4): E(f"ds_read_b128 {vr(RK+16*tt+4*k,4)}, v{t+1} offset:{tt*16*272+k*64}")
    E("s_waitcnt lgkmcnt(0)")
def read_b(base):
    for k in range(4): E(f"ds_read_b128 {vr(RB+4*k,4)}, v{vL16} offset:{base+k*1024}")
def mm(R):
    for k in range(4):
        E(f"s_waitcnt lgkmcnt({3-k})" if not STAMP else "s_waitcnt lgkmcnt(0)")
        for tt in range(2): mfma(RD+4*tt,R+16*tt+4*k,RB+4*k,None if k==0 else RD+4*tt)
def pack_store(src,va,so,mask):
    for i in range(4): E(f"v_cvt_pk_bf16_f32 v{RD+8+i}, v{src+2*i}, v{src+2*i+1}")
    setexec(*mask); E(f"buffer_store_dwordx4 {vr(RD+8,4)}, v{va}, {WS}, {so} offen sc1"); fullexec(); q.append('st')
def gemm_phase(R,p,va,so,mask):
    read_b(OPB[p]); mm(R); nop(8); pack_store(RD,va,so,mask)
L("L_wloop")
E("s_barrier")
l0only("wq"); bounce('wq',RWQ,False); L("L_skip_wq")
stamp(1)
gemm_phase(RWQ,0,vAQ,S['pQP'],M9)
stamp(2)
l0only("k"); issue(1); bounce_k(); L("L_skip_k")
E("s_barrier")
stamp(3)
read_b(OPB[1]); mm(RK);
E(f"s_mov_b32 {sT}, 0x3e0293ee")
nop(7)
d=RD; t=RD+8
E(f"v_max3_f32 v{t}, v{d}, v{d+1}, v{d+2}"); E(f"v_max3_f32 v{t+1}, v{d+3}, v{d+4}, v{d+5}")
E(f"v_max3_f32 v{t}, v{t}, v{d+6}, v{d+7}"); E(f"v_max_f32 v{t}, v{t}, v{t+1}")
def xrow(op,a,b):
    for sw in ("16","32"):
        E(f"v_mov_b32 v{b}, v{a}"); nop(2); E(f"v_permlane{sw}_swap_b32 v{a}, v{b}"); E(f"{op} v{a}, v{a}, v{b}")
xrow("v_max_f32",t,t+1)
E(f"v_mul_f32 v{t}, {sT}, v{t}")
for i in range(8): E(f"v_fma_f32 v{d+i}, v{d+i}, {sT}, -v{t}")
for i in range(8): E(f"v_exp_f32 v{d+i}, v{d+i}")
nop(1)
for i in range(4): E(f"v_cvt_pk_bf16_f32 v{t+4+i}, v{d+2*i}, v{d+2*i+1}")
E(f"s_lshl_b32 {sT}, {sW}, 10"); E(f"v_add_u32 v{t+2}, {sT}, v{vL16}")
E(f"ds_write_b128 v{t+2}, {vr(t+4,4)} offset:{PB}")
E(f"v_add_f32 v{d}, v{d}, v{d+1}"); E(f"v_add_f32 v{d+2}, v{d+2}, v{d+3}"); E(f"v_add_f32 v{d+4}, v{d+4}, v{d+5}"); E(f"v_add_f32 v{d+6}, v{d+6}, v{d+7}")
E(f"v_add_f32 v{d}, v{d}, v{d+2}"); E(f"v_add_f32 v{d+4}, v{d+4}, v{d+6}"); E(f"v_add_f32 v{t+1}, v{d}, v{d+4}")
xrow("v_add_f32",t+1,t+3)
E(f"s_lshl_b32 {sT}, {sW}, 3"); E(f"v_lshl_add_u32 v{t+2}, v{vN}, 5, {sT}")
setexec(0xFFFF,0); E(f"ds_write_b64 v{t+2}, {vr(t,2)} offset:{SMB}"); fullexec()
l0only("v"); bounce('v',RV,False); L("L_skip_v")
E("s_waitcnt lgkmcnt(0)")
E("s_barrier")
E(f"v_lshlrev_b32 v249, 5, v{vN}")
read_b(PB)
E(f"ds_read_b128 v[240:243], v249 offset:{SMB}"); E(f"ds_read_b128 v[244:247], v249 offset:{SMB+16}")
for k in range(4):
    E(f"s_waitcnt lgkmcnt({5-k})" if not STAMP else "s_waitcnt lgkmcnt(0)")
    for tt in range(2): mfma(RD+8*k+4*tt,RV+16*tt+4*k,RB+4*k,None)
E("s_waitcnt lgkmcnt(0)")
E("v_max3_f32 v248, v240, v242, v244"); E("v_max_f32 v248, v248, v246")
for i in range(4): E(f"v_sub_f32 v{240+2*i}, v{240+2*i}, v248")
for i in range(4): E(f"v_exp_f32 v{240+2*i}, v{240+2*i}")
nop(1)
E("v_mul_f32 v249, v240, v241")
for i in range(1,4): E(f"v_fmac_f32 v249, v{240+2*i}, v{241+2*i}")
for i in range(8): E(f"v_mul_f32 v{RD+i}, v240, v{RD+i}")
for k in range(1,4):
    for i in range(8): E(f"v_fmac_f32 v{RD+i}, v{240+2*k}, v{RD+8*k+i}")
pack_store(RD,vAQ,S['pAP'],M8)
E(f"v_lshlrev_b32 v240, 11, v{vN}")
E(f"s_lshl_b32 {sT}, {sW}, 1"); E(f"s_lshl_b32 exec_lo, 3, {sT}"); E("s_mov_b32 exec_hi, 0")
E(f"buffer_store_dwordx2 v[248:249], v240, {WS}, {S['pAST']} offen sc1"); fullexec(); q.append('st')
stamp(4)
l0only("wo"); issue(2); bounce('wo',RWO,True); L("L_skip_wo")
E("s_barrier")
stamp(5)
gemm_phase(RWO,2,vAL,S['pOP'],M8)
l0only("w1"); issue(3); bounce('w1',RW1,False); L("L_skip_w1")
E("s_barrier")
stamp(6)
E(f"s_cmp_eq_u32 {sA1}, 0"); E("s_cbranch_scc1 L_nof1")
gemm_phase(RW1,3,vAL,S['pF1'],M9); q.pop()
L("L_nof1")
l0only("w2"); issue(4); bounce('w2',RW2,False); L("L_skip_w2")
E("s_barrier")
stamp(7)
E(f"s_cmp_eq_u32 {sA2}, 0"); E("s_cbranch_scc1 L_nof2")
gemm_phase(RW2,4,vAL,S['pF2'],M8)
L("L_nof2")
stamp(8)
bump(['pQP','pAP','pAST','pOP','pF1','pF2'])
E(f"s_add_u32 {sLAY}, {sLAY}, 1"); E(f"s_cmp_lt_u32 {sLAY}, 2"); E("s_cbranch_scc1 L_wloop")
E("s_branch L_fin")
L("L_comm")
G=0; X=64; MP=72; A1=80; AG=88; D0=92; D1=96; D2=100; D3=104; T=108; AW=160
vG1,vCS,vST,vG3,vAST,vLW,vSTa,vOW,vONE=140,141,142,143,144,145,146,147,148
E(f"v_and_b32 v{T}, 7, v{vN}"); E(f"v_lshrrev_b32 v{T+1}, 3, v{vN}")
E(f"v_lshlrev_b32 v{vOW}, 11, v{T}"); E(f"v_lshl_add_u32 v{vOW}, v{vG}, 3, v{vOW}")
lin(sT,0,[(sLO,8),(sW,6)]); E(f"v_add_u32 v{vOW}, {sT}, v{vOW}")
E(f"buffer_load_dwordx2 v[{T+8}:{T+9}], v{vOW}, {SX}, 0 offen"); E(f"buffer_load_dwordx2 v[{T+10}:{T+11}], v{vOW}, {SX}, 0 offen offset:32")
for i in range(4): E(f"v_mov_b32 v{G+i}, -1")
E(f"v_lshlrev_b32 v{vSTa}, 3, v{T}"); setexec(0xFFFFFFFF,0); E(f"v_add_u32 v{vSTa}, 4, v{vSTa}"); fullexec()
E(f"v_lshlrev_b32 v{T+2}, 11, v{vN}")
for lay in range(2):
    def so(k):
        E(f"s_add_u32 {sT}, {S[k]}, {lay*LS:#x}"); return sT
    setexec(*M9)
    for va,k in ((vAQ,'pQP'),(vAL,'pF1')): E(f"buffer_store_dwordx4 {vr(G,4)}, v{va}, {WS}, {so(k)} offen sc1")
    setexec(*M8)
    for va,k in ((vAQ,'pAP'),(vAL,'pOP'),(vAL,'pF2')): E(f"buffer_store_dwordx4 {vr(G,4)}, v{va}, {WS}, {so(k)} offen sc1")
    E(f"s_lshl_b32 {sT2}, {sW}, 1"); E(f"s_lshl_b32 exec_lo, 3, {sT2}"); E("s_mov_b32 exec_hi, 0")
    E(f"buffer_store_dwordx2 {vr(G,2)}, v{T+2}, {WS}, {so('pAST')} offen sc1")
    setexec(0x00F0000F,0xFF)
    E(f"s_cmp_lg_u32 {sW}, {lay}"); E(f"s_cbranch_scc1 L_nclr{lay}")
    for k in ('pQST','pF1ST'): E(f"buffer_store_dword v{G}, v{vSTa}, {WS}, {so(k)} offen sc1")
    L(f"L_nclr{lay}")
fullexec()
lin(S['gF2'],(F2P-LS)&0xffffffff,[(sLO,16)]); lin(S['gOP'],OP,[(sLO,16)]); lin(S['gQP'],QP,[(sLO,16),("s4",14)]); lin(S['gQCS'],QP+8*65536,[("s4",14)])
lin(S['gQST'],QST,[(sHI,10),(sLO,3)]); lin(S['gAP'],AP,[(sLO,16),("s4",14)]); lin(S['gAST'],AST,[(sLO,11),("s4",9)])
lin(S['gF1'],F1P,[(sETA,14)]); lin(S['gF1CS'],F1CS,[(sETA,11)]); lin(S['gF1ST'],F1ST,[(sETA,10)])
E(f"v_and_b32 v{T+3}, 2, v{vG}"); E(f"v_add_u32 v{T+3}, v{T+3}, v{T+1}")
E(f"v_and_b32 v{T+4}, 1, v{vG}")
E(f"s_lshl_b32 {sT}, {sW}, 9"); E(f"v_lshl_add_u32 v{vG1}, v{T+3}, 11, {sT}"); E(f"v_lshl_add_u32 v{vG1}, v{T+4}, 7, v{vG1}"); E(f"v_lshl_add_u32 v{vG1}, v{T}, 4, v{vG1}")
E(f"s_lshl_b32 {sT}, {sW}, 6"); E(f"v_lshl_add_u32 v{vCS}, v{T+3}, 8, {sT}"); E(f"v_lshl_add_u32 v{vCS}, v{T+4}, 4, v{vCS}")
E(f"v_lshl_add_u32 v{vST}, v{vG}, 1, v{T+1}"); E(f"v_lshlrev_b32 v{vST}, 7, v{vST}")
E(f"v_lshl_add_u32 v149, v{T}, 3, v{vST}")
E(f"s_lshl_b32 {sT}, {sW}, 12"); E(f"v_lshl_add_u32 v{vG3}, v{vG}, 9, {sT}"); E(f"v_lshl_add_u32 v{vG3}, v{vN}, 4, v{vG3}")
E(f"s_lshl_b32 {sT}, {sW}, 7"); E(f"v_lshl_add_u32 v{vAST}, v{T+1}, 6, {sT}"); E(f"v_lshl_add_u32 v{vAST}, v{vG}, 4, v{vAST}")
E(f"s_lshl_b32 {sT}, {sW}, 5"); E(f"v_lshl_add_u32 v{vLW}, v{vG}, 3, {sT}"); E(f"v_lshl_add_u32 v{vLW}, v{vN}, 8, v{vLW}")
E(f"s_lshl_b32 {sT}, {sW}, 10"); E(f"v_add_u32 v150, {sT}, v{vL16}")
E(f"v_mov_b32 v{vONE}, 1.0")
E(f"v_and_b32 v{T+5}, 1, v{vN}"); E(f"v_lshlrev_b32 v{T+5}, 4, v{T+5}"); E(f"v_mov_b32 v{T+6}, 0xffff"); E(f"v_lshlrev_b32 v{T+6}, v{T+5}, v{T+6}")
E(f"v_lshrrev_b32 v{T+5}, 1, v{vN}")
for i in range(8):
    E(f"v_cmp_eq_u32 vcc, {i}, v{T+5}"); nop(2); E(f"v_cndmask_b32 v{MP+i}, 0, v{T+6}, vcc")
for i in range(8): E(f"v_and_b32 v{A1+i}, 0x3f803f80, v{MP+i}")
E(f"v_cmp_eq_u32 vcc, 0, v{T+4}"); nop(2)
for i in range(4): E(f"v_cndmask_b32 v{AG+i}, v{A1+4+i}, v{A1+i}, vcc")
E("s_waitcnt vmcnt(0)")
E("s_branch L_x0")
def poll_end(tag,regs):
    E(f"v_cmp_u_f32 {sP}, v{regs[0]}, v{regs[1]}")
    if len(regs)>2:
        E(f"v_cmp_u_f32 vcc, v{regs[2]}, v{regs[3]}"); E(f"s_or_b64 {sP}, {sP}, vcc")
    E(f"s_cmp_eq_u64 {sP}, 0"); E(f"s_cbranch_scc1 L_pd_{tag}")
    E(f"s_sub_u32 {sBUD}, {sBUD}, 1"); E(f"s_cmp_gt_i32 {sBUD}, 0"); E(f"s_cbranch_scc1 L_pl_{tag}")
    L(f"L_pd_{tag}")
def ror8(r,n):
    for i in range(n): E(f"v_add_f32_dpp v{r+i}, v{r+i}, v{r+i} row_ror:8 row_mask:0xf bank_mask:0xf")
def g1(tag,key,ng):
    L(f"L_pl_{tag}")
    E(f"s_mov_b32 {sT}, {S[key]}")
    for i in range(ng):
        for h in range(2): E(f"buffer_load_dwordx4 {vr(G+8*i+4*h,4)}, v{vG1}, {WS}, {sT} offen offset:{h*256} sc1")
        if i<ng-1: E(f"s_add_u32 {sT}, {sT}, 8192")
    for i in range(ng):
        for h in range(2):
            E(f"s_waitcnt vmcnt({2*ng-1-2*i-h})"); mfma(D0+4*h,AG,G+8*i+4*h,None if i==0 else D0+4*h)
    nop(8); poll_end(tag,[D0,D1]); ror8(D0,8)
    for i in range(8): E(f"v_add_f32 v{D0+i}, v{D0+i}, v{X+i}")
    for i in range(4): E(f"v_cvt_pk_bf16_f32 v{T+8+i}, v{D0+2*i}, v{D0+2*i+1}")
def x_out(p):
    for i in range(4):
        E(f"v_lshlrev_b32 v{X+2*i}, 16, v{T+8+i}"); E(f"v_and_b32 v{X+2*i+1}, 0xffff0000, v{T+8+i}")
    setexec(0xFF00FF00,0xFF00FF00)
    for i in range(4): E(f"v_mov_b32 v{T+8+i}, 0x3f803f80")
    fullexec()
    E(f"ds_write_b128 v150, {vr(T+8,4)} offset:{OPB[p]}"); E("s_waitcnt lgkmcnt(0)")
def gram(tag,p,key):
    for k in range(4): E(f"ds_read_b128 {vr(G+4*k,4)}, v{vL16} offset:{OPB[p]+k*1024}")
    E("s_waitcnt lgkmcnt(0)")
    for k in range(4): mfma(D0,G+4*k,G+4*k,None if k==0 else D0)
    nop(8)
    for i in range(1,4):
        setexec((1<<i)|(1<<(20+i)),0); E(f"v_mov_b32 v{D0}, v{D0+i}")
    setexec(0x00F0000F,0xFF); E(f"buffer_store_dword v{D0}, v{vSTa}, {WS}, {S[key]} offen sc1"); fullexec()
def ln_stats(r):
    ror8(D2,1); ror8(D3,1)
    E(f"s_mov_b32 {sT}, 0x3a800000")
    E(f"v_mul_f32 v{D2}, {sT}, v{D2}"); E(f"v_mul_f32 v{D3}, {sT}, v{D3}")
    E(f"v_fma_f32 v{D3}, -v{D2}, v{D2}, v{D3}"); E(f"v_max_f32 v{D3}, 0, v{D3}"); E(f"v_add_f32 v{D3}, 0x3727c5ac, v{D3}")
    E(f"v_rsq_f32 v{D3}, v{D3}")
def stat_mfma(r):
    E(f"v_mfma_f32_16x16x4_f32 {vr(D2,4)}, v{vONE}, v{r}, 0"); E(f"v_mfma_f32_16x16x4_f32 {vr(D3,4)}, v{vONE}, v{r+1}, 0")
L("L_cloop")
E(f"s_cmp_lt_u32 {sLAY}, 2"); E("s_cbranch_scc1 L_nf"); E(f"s_cmp_lg_u32 {sHI}, {sW}"); E("s_cbranch_scc1 L_fin"); L("L_nf")
g1("f2",'gF2',7)
E(f"s_cmp_lt_u32 {sLAY}, 2"); E("s_cbranch_scc1 L_x0")
setexec(*M8)
E(f"buffer_store_dwordx2 v[{T+8}:{T+9}], v{vOW}, {SOUT}, 0 offen"); E(f"buffer_store_dwordx2 v[{T+10}:{T+11}], v{vOW}, {SOUT}, 0 offen offset:32")
fullexec(); E("s_branch L_fin")
L("L_x0")
x_out(0)
stamp(1)
E("s_barrier")
E(f"s_cmp_lg_u32 {sW}, 0"); E("s_cbranch_scc1 L_ng0"); gram("q",0,'pQST'); L("L_ng0")
l0only("flag")
E(f"s_cmp_lg_u32 {sW}, 1"); E("s_cbranch_scc1 L_nflag")
E(f"v_mov_b32 v{T}, s2"); E(f"v_mov_b32 v{T+1}, 1"); setexec(1,0); E(f"buffer_store_byte v{T+1}, v{T}, {SDBG}, 0 offen sc1"); fullexec()
L("L_nflag")
E(f"v_lshlrev_b32 v{T}, 2, v{vLANE}"); E(f"s_mov_b32 {sT}, 0x01010101")
L("L_fl")
E("s_sleep 6")
E(f"buffer_load_dword v{T+1}, v{T}, {SDBG}, 0 offen sc1"); E("s_waitcnt vmcnt(0)")
E(f"v_cmp_ne_u32 {sP}, {sT}, v{T+1}"); E(f"s_cmp_eq_u64 {sP}, 0"); E("s_cbranch_scc1 L_skip_flag")
E(f"s_sub_u32 {sBUD}, {sBUD}, 1"); E(f"s_cmp_gt_i32 {sBUD}, 0"); E("s_cbranch_scc1 L_fl")
L("L_skip_flag")
stamp(2)
L("L_pl_q")
E(f"buffer_load_dwordx2 v[{T}:{T+1}], v{vST}, {WS}, {S['gQST']} offen sc1")
for j,key in enumerate(('gQCS','gQP')):
    for p in range(2):
        for i in range(2): E(f"buffer_load_dwordx4 {vr(G+16*j+8*p+4*i,4)}, v{vG3}, {WS}, {S[key]} offen offset:{p*2048+i*256} sc1")
E("s_waitcnt vmcnt(8)"); stat_mfma(T)
for j in range(2):
    for p in range(2):
        for i in range(2):
            c=4*j+2*p+i; E(f"s_waitcnt vmcnt({7-c})"); mfma(D1-4*j,A1+4*p,G+4*c,None if (p,i)==(0,0) else D1-4*j)
nop(2); ln_stats(T); nop(2)
for i in range(4): E(f"v_fma_f32 v{D0+i}, -v{D2}, v{D1+i}, v{D0+i}")
for i in range(4): E(f"v_mul_f32 v{D0+i}, v{D3}, v{D0+i}")
E(f"v_add_f32 v{T+2}, v{D3+1}, v{D2+1}")
poll_end("q",[D0,T+2])
def small_out(p):
    for i in range(2): E(f"v_cvt_pk_bf16_f32 v{T+8+i}, v{D0+2*i}, v{D0+2*i+1}")
    E(f"ds_write_b64 v{vLW}, {vr(T+8,2)} offset:{OPB[p]}"); E("s_waitcnt lgkmcnt(0)")
small_out(1)
stamp(3)
E("s_barrier")
E("s_barrier")
L("L_pl_a")
E(f"buffer_load_dwordx4 {vr(T,4)}, v{vAST}, {WS}, {S['gAST']} offen sc1")
for p in range(2):
    for i in range(2): E(f"buffer_load_dwordx4 {vr(G+8*p+4*i,4)}, v{vG3}, {WS}, {S['gAP']} offen offset:{p*2048+i*256} sc1")
E("s_waitcnt vmcnt(4)")
E(f"v_max_f32 v{T+4}, v{T}, v{T+2}"); xrow("v_max_f32",T+4,T+5)
E(f"v_sub_f32 v{T}, v{T}, v{T+4}"); E(f"v_sub_f32 v{T+2}, v{T+2}, v{T+4}"); E(f"v_exp_f32 v{T}, v{T}"); E(f"v_exp_f32 v{T+2}, v{T+2}"); nop(1)
E(f"v_cvt_pk_bf16_f32 v{T}, v{T}, v{T}"); E(f"v_cvt_pk_bf16_f32 v{T+2}, v{T+2}, v{T+2}")
for p in range(2):
    for i in range(2):
        for r in range(4): E(f"v_and_b32 v{AW+8*p+4*i+r}, v{MP+4*p+r}, v{T+2*i}")
E(f"v_and_b32 v{T}, 0xffff0000, v{T}"); E(f"v_and_b32 v{T+2}, 0xffff0000, v{T+2}")
for c in range(4):
    E(f"s_waitcnt vmcnt({3-c})"); mfma(D0,AW+4*c,G+4*c,None if c==0 else D0)
E(f"v_mul_f32 v{T+4}, v{T}, v{T+1}"); E(f"v_fmac_f32 v{T+4}, v{T+2}, v{T+3}"); xrow("v_add_f32",T+4,T+5)
E(f"v_rcp_f32 v{T+4}, v{T+4}"); nop(1)
E(f"v_readlane_b32 {sC0}, v{T+4}, 0"); E(f"v_readlane_b32 {sC1}, v{T+4}, 8"); nop(2)
E(f"v_mov_b32 v{T+4}, {sC1}"); setexec(0xFFFFFFFF,0); E(f"v_mov_b32 v{T+4}, {sC0}"); fullexec()
for i in range(4): E(f"v_mul_f32 v{D0+i}, v{T+4}, v{D0+i}")
poll_end("a",[D0,D0+1])
small_out(2)
stamp(4)
E("s_barrier")
g1("o",'gOP',8)
x_out(3)
stamp(5)
E("s_barrier")
E(f"s_cmp_lg_u32 {sW}, 0"); E("s_cbranch_scc1 L_ng1"); E(f"s_cmp_eq_u32 {sA1}, 0"); E("s_cbranch_scc1 L_ng1"); gram("f",3,'pF1ST'); L("L_ng1")
E(f"s_cmp_eq_u32 {sA2}, 0"); E("s_cbranch_scc1 L_nog2")
E0,E1=AW,AW+4
L("L_pl_h")
E(f"buffer_load_dwordx2 v[{T}:{T+1}], v149, {WS}, {S['gF1ST']} offen sc1")
for i in range(2):
    for h in range(2): E(f"buffer_load_dwordx4 {vr(G+8*i+4*h,4)}, v{vCS}, {WS}, {S['gF1CS']} offen offset:{i*1024+h*32} sc1")
E(f"s_add_u32 {sT}, {S['gF1']}, 8192")
for i in range(2):
    for h in range(2): E(f"buffer_load_dwordx4 {vr(G+16+8*i+4*h,4)}, v{vG1}, {WS}, {S['gF1'] if i==0 else sT} offen offset:{h*256} sc1")
E("s_waitcnt vmcnt(8)"); stat_mfma(T)
for j in range(2):
    for i in range(2):
        for h in range(2):
            c=4*j+2*i+h; dd=(E0 if j==0 else D0)+4*h
            E(f"s_waitcnt vmcnt({7-c})"); mfma(dd,AG,G+4*c,None if i==0 else dd)
nop(2); ln_stats(T); nop(2)
E(f"v_add_f32 v{T+2}, v{D3+1}, v{D2+1}")
for i in range(8): E(f"v_fma_f32 v{D0+i}, -v{D2}, v{E0+i}, v{D0+i}")
poll_end("h",[D0,D1,T+2,T+2])
ror8(D0,8)
E(f"s_mov_b32 {sT}, 0xbfb8aa3b")
for i in range(8): E(f"v_mul_f32 v{D0+i}, v{D3}, v{D0+i}")
for i in range(8): E(f"v_mul_f32 v{E0+i}, {sT}, v{D0+i}")
for i in range(8): E(f"v_exp_f32 v{E0+i}, v{E0+i}")
for i in range(8): E(f"v_add_f32 v{E0+i}, 1.0, v{E0+i}")
for i in range(8): E(f"v_rcp_f32 v{E0+i}, v{E0+i}")
for i in range(8): E(f"v_mul_f32 v{D0+i}, v{E0+i}, v{D0+i}")
for i in range(4): E(f"v_cvt_pk_bf16_f32 v{T+8+i}, v{D0+2*i}, v{D0+2*i+1}")
E(f"ds_write_b128 v150, {vr(T+8,4)} offset:{OPB[4]}"); E("s_waitcnt lgkmcnt(0)")
L("L_nog2")
stamp(6)
E("s_barrier")
bump(['pQST','pF1ST','gF2','gOP','gQP','gQCS','gQST','gAP','gAST','gF1','gF1CS','gF1ST'])
E(f"s_add_u32 {sLAY}, {sLAY}, 1"); E("s_branch L_cloop")
L("L_fin")
if STAMP:
    E(f"s_mov_b32 {sLAY}, 1"); stamp(9)
    E(f"s_mov_b32 s{STS+9}, {sBUD}")
    E("s_lshl_b32 s4, s2, 3"); E("s_add_u32 s4, s4, s3"); E("s_lshl_b32 s4, s4, 7"); E(f"s_add_u32 s4, s4, {STB_WS:#x}")
    E("v_mov_b32 v1, 0"); setexec(1,0)
    for i in range(20):
        E(f"v_mov_b32 v2, s{STS+i}"); E(f"buffer_store_dword v2, v1, {WS}, s4 offen offset:{4*i}"); nop(2)
    E("s_waitcnt vmcnt(0)")
L("L_end")
E("s_endpgm")
out.append(""".section .rodata,"a"
.p2align 6
.amdhsa_kernel %s_kernel
  .amdhsa_next_free_vgpr 256
  .amdhsa_next_free_sgpr 102
  .amdhsa_accum_offset 256
  .amdhsa_group_segment_fixed_size 0
  .amdhsa_kernarg_size 88
  .amdhsa_user_sgpr_count 2
  .amdhsa_user_sgpr_kernarg_segment_ptr 1
  .amdhsa_system_sgpr_workgroup_id_x 1
.end_amdhsa_kernel"""%NAME)
open(sys.argv[1],"w").write("\n".join(out)+"\n")
```

```python
import sys
NAME="interleave_layers__sliding_block_cached__dense_activation_silu__decode"
opts=dict(a.split('=') for a in sys.argv[2:])
STAMP=int(opts.get('stamp',0))
STAGE=int(opts.get('stage',0))
NT=opts.get('nt','1')=='1'
out=[]
def E(s): out.append("    "+s)
def L(s): out.append(s+":")
def C(s): out.append("    ; "+s)
def nop(n): E(f"s_nop {n-1}")
LS=0x300000
AP,OP,F1P,F2P,QST,F1ST,AST,QP,F1CS=0,0x80000,0x100000,0x180000,0x200000,0x208000,0x210000,0x214000,0x2A4000
FLG,EPO=0x2C0000,0x2D0000
STB_WS=0x600000
WS_REC=0x800000
OPB=[0,4096,8192,12288,16384]; PB=20480; SMB=24576; BOUNCE=25600; BSZ=8704
LDS=61440
WS="s[8:11]"; SWQ="s[12:15]"; SK="s[16:19]"; SV="s[20:23]"; SWO="s[24:27]"; SW1="s[28:31]"; SW2="s[32:35]"
SX="s[36:39]"; SOUT="s[40:43]"; SDBG="s[44:47]"
sW,sLO,sHI,sLAY,sBUD,sT,sT2,sETA="s48","s49","s50","s51","s52","s53","s54","s55"
sA1,sA2="s56","s57"
offs=["pQP","pAP","pAST","pOP","pF1","pF2","pQST","pF1ST","gF2","gOP","gQP","gQCS","gQST","gAP","gAST","gF1","gF1CS","gF1ST"]
S={n:f"s{58+i}" for i,n in enumerate(offs)}
sC0,sC1="s76","s77"; sP="s[78:79]"; sP0,sP1="s78","s79"
STS=80
nst=[0]
def stamp(i):
    if STAMP:
        E("s_memrealtime s[100:101]"); E("s_waitcnt lgkmcnt(0)")
        E(f"s_cmp_eq_u32 {sLAY}, 0"); E(f"s_cselect_b32 s{STS+i}, s100, s{STS+i}");
        if STAMP!=2 or i==9: E(f"s_cselect_b32 s{STS+10+i}, s{STS+10+i}, s100")
def stamp2(i):
    if STAMP==2: E("s_memrealtime s[100:101]"); E("s_waitcnt lgkmcnt(0)"); E(f"s_mov_b32 s{STS+i}, s100")
def setexec(lo,hi):
    E(f"s_mov_b32 exec_lo, {lo:#x}"); E(f"s_mov_b32 exec_hi, {hi:#x}")
def fullexec(): E("s_mov_b64 exec, -1")
def vr(a,n): return f"v[{a}:{a+n-1}]"
def mfma(d,a,b,c): E(f"v_mfma_f32_16x16x32_bf16 {vr(d,4)}, {vr(a,4)}, {vr(b,4)}, {('0' if c is None else vr(c,4))}")
def srd(s,ptr,n):
    b=int(s[2:s.index(':')])
    E(f"s_mov_b32 s{b}, s{ptr}"); E(f"s_and_b32 s{b+1}, s{ptr+1}, 0xffff"); E(f"s_mov_b32 s{b+2}, {n:#x}"); E(f"s_mov_b32 s{b+3}, 0x20000")
vL16,vAQ,vAL,vLANE,vN,vG=255,254,253,252,251,250
hdr=open(f"cdna_kernels/{NAME}.s.ref").read().split("; Override")[0]
out.append(hdr.rstrip())
out.append(f"; @launch grid=(256,1,1) block=(512,1,1) lds={LDS}")
out.append('.amdgcn_target "amdgcn-amd-amdhsa--gfx950"\n.text\n.globl %s_kernel\n.p2align 8\n.type %s_kernel,@function\n%s_kernel:'%(NAME,NAME,NAME))
E("s_cmp_ge_u32 s2, 256"); E("s_cbranch_scc1 L_end")
if opts.get('perm'): E("s_lshr_b32 s3, s2, 3"); E("s_and_b32 s2, s2, 7"); E("s_lshl_b32 s2, s2, 5"); E("s_or_b32 s2, s2, s3")
E("s_load_dwordx16 s[80:95], s[0:1], 0")
E("s_load_dwordx4 s[96:99], s[0:1], 64")
E("s_load_dwordx2 s[100:101], s[0:1], 80")
E("v_lshrrev_b32 v1, 6, v0"); E(f"v_and_b32 v{vLANE}, 63, v0")
E(f"s_and_b32 {sLO}, s2, 7"); E(f"v_readfirstlane_b32 s3, v1"); E(f"s_lshr_b32 {sHI}, s2, 3")
E(f"s_and_b32 {sW}, s3, 3")
E(f"v_lshlrev_b32 v{vL16}, 4, v{vLANE}"); E(f"v_and_b32 v{vN}, 15, v{vLANE}"); E(f"v_lshrrev_b32 v{vG}, 4, v{vLANE}")
E(f"s_lshr_b32 s4, {sHI}, 3")
E(f"s_and_b32 s5, {sHI}, 7")
E(f"s_lshl_b32 {sETA}, s4, 3"); E(f"s_add_u32 {sETA}, {sETA}, {sLO}")
E(f"s_add_u32 {sT}, {sHI}, 1"); E(f"s_and_b32 {sT}, {sT}, 3"); E(f"s_and_b32 {sT2}, {sHI}, 28"); E(f"s_add_u32 s6, {sT}, {sT2}")
E("s_cmp_lt_u32 s6, 28"); E(f"s_cselect_b32 {sA1}, 1, 0"); E("s_lshl_b32 s6, s6, 3"); E(f"s_add_u32 s6, s6, {sLO}")
E(f"s_xor_b32 {sT}, {sT}, 2"); E(f"s_add_u32 {sT2}, {sT2}, 4"); E(f"s_and_b32 {sT2}, {sT2}, 28"); E(f"s_add_u32 {sT}, {sT}, {sT2}")
E(f"s_mul_i32 s7, {sLO}, 28"); E(f"s_add_u32 s7, s7, {sT}"); E(f"s_lshl_b32 {sT2}, {sT}, 3"); E(f"s_add_u32 {sT2}, {sT2}, {sLO}")
E(f"s_cmp_lt_u32 {sT}, 28"); E(f"s_cselect_b32 {sA2}, 1, 0"); E(f"s_cselect_b32 s7, s7, {sT2}")
E(f"s_mov_b32 {sLAY}, 0"); E(f"s_mov_b32 {sBUD}, 40000")
E("s_waitcnt lgkmcnt(0)")
srd(SWQ,86,1024*4096*2)
E("s_cmp_ge_u32 s3, 4"); E("s_cbranch_scc1 L_common")
def tile_voff(v,stride):
    E(f"v_lshrrev_b32 v{v}, 2, v{vLANE}"); E(f"v_mul_u32_u24 v{v}, {stride}, v{v}")
    E(f"v_and_b32 v{v+1}, 3, v{vLANE}"); E(f"v_lshl_add_u32 v{v}, v{v+1}, 4, v{v}")
    E(f"s_lshl_b32 {sT2}, {sW}, 6"); E(f"v_add_u32 v{v}, {sT2}, v{v}")
SWZ=int(opts.get('swz',0))
def swz_fix():
    if SWZ==1:
        E(f"s_bfe_u32 {sT2}, {sT}, 0x20008"); E(f"s_sub_u32 {sT2}, {sW}, {sT2}"); E(f"s_mul_i32 {sT2}, {sT2}, 192"); E(f"s_add_u32 {sT}, {sT}, {sT2}")
    if SWZ==2:
        E(f"s_bfe_u32 {sT2}, {sT}, 0x10008"); E(f"s_lshl_b32 {sT2}, {sT2}, 7"); E(f"s_sub_u32 {sT}, {sT}, {sT2}")
        E(f"s_lshr_b32 {sT2}, {sW}, 1"); E(f"s_lshl_b32 {sT2}, {sT2}, 7"); E(f"s_add_u32 {sT}, {sT}, {sT2}")
def tile_loads(dst,v,srdn,step):
    if step>4096: swz_fix()
    for i in range(8):
        E(f"buffer_load_dwordx4 {vr(dst+4*i,4)}, v{v}, {srdn}, {sT} offen"+(" nt" if NT else ""))
        if i<7: E(f"s_add_u32 {sT}, {sT}, {step}")
RWQ,RK,RV,RWO,RW1,RW2,RB,RD=0,32,64,96,128,160,192,208
def ld_wq():
    tile_voff(RD,8192); E(f"s_lshl_b32 {sT}, {sLO}, 20"); E(f"s_lshl_b32 {sT2}, {sHI}, 8"); E(f"s_add_u32 {sT}, {sT}, {sT2}")
    tile_loads(RWQ,RD,SWQ,16*8192)
ld_wq()
L("L_common")
srd(WS,100,WS_REC); srd(SK,82,8*4*4096*128*2); srd(SV,84,8*4*4096*128*2); srd(SWO,88,4096*1024*2)
srd(SW1,92,1024*3584*2); srd(SW2,94,3584*1024*2); srd(SX,80,16384); srd(SOUT,96,16384); srd(SDBG,98,256)
def lin(dst,base,terms):
    E(f"s_mov_b32 {dst}, {base:#x}")
    for r,sh in terms:
        E(f"s_lshl_b32 {sT2}, {r}, {sh}"); E(f"s_add_u32 {dst}, {dst}, {sT2}")
E("s_cmp_ge_u32 s3, 4"); E("s_cbranch_scc1 L_common2")
def kv_base():
    lin(sT,3072*256,[(sLO,22),("s4",20),("s5",15)])
def ld_k():
    kv_base(); E(f"s_lshl_b32 {sT2}, {sW}, 13"); E(f"s_add_u32 {sT}, {sT}, {sT2}")
    tile_loads(RK,vL16,SK,1024)
def ld_v():
    tile_voff(RD+2,256); kv_base(); tile_loads(RV,RD+2,SV,16*256)
def ld_wo():
    tile_voff(RD+4,2048); lin(sT,0,[(sETA,18),("s5",8)]); E(f"s_xor_b32 {sT}, {sT}, 0x200"); tile_loads(RWO,RD+4,SWO,16*2048)
def inact(flag,v):
    E(f"s_cmp_eq_u32 {flag}, 1"); E(f"s_cselect_b32 {sT}, {sT}, 0"); E(f"s_cselect_b32 {sT2}, 0, 0x40000000"); E(f"v_or_b32 v{v}, {sT2}, v{v}")
def ld_w1():
    tile_voff(RD+6,7168); E(f"s_mul_i32 {sT}, {sLO}, {128*7168}"); E(f"s_lshr_b32 {sT2}, s6, 3"); E(f"s_lshl_b32 {sT2}, {sT2}, 8"); E(f"s_add_u32 {sT}, {sT}, {sT2}")
    inact(sA1,RD+6); tile_loads(RW1,RD+6,SW1,16*7168)
def ld_w2():
    tile_voff(RD+4,2048); E(f"s_lshr_b32 {sT}, s7, 3"); E(f"s_lshl_b32 {sT}, {sT}, 18"); E(f"s_and_b32 {sT2}, s7, 7"); E(f"s_lshl_b32 {sT2}, {sT2}, 8"); E(f"s_add_u32 {sT}, {sT}, {sT2}"); inact(sA2,RD+4); tile_loads(RW2,RD+4,SW2,16*2048)
sched={0:[[ld_k,ld_v,ld_wo,ld_w1,ld_w2],[],[],[],[]],
       1:[[ld_k,ld_v],[ld_wo],[ld_w1],[ld_w2],[]],
       2:[[ld_k],[ld_v],[ld_wo],[ld_w1],[ld_w2]],
       3:[[ld_k,ld_v],[ld_wo,ld_w1],[ld_w2],[],[]],4:[[],[],[],[],[]]}[4]
order=['wq']; names={ld_k:'k',ld_v:'v',ld_wo:'wo',ld_w1:'w1',ld_w2:'w2'}
q=['wq']*8
def issue(pt):
    for f in sched[pt]:
        f(); q.extend([names[f]]*8)
def iss(f):
    f(); q.extend([names[f]]*8)
def ack(tag=None):
    if tag: E(f"s_cmp_eq_u32 {sLAY}, 0"); E(f"s_cbranch_scc1 L_na_{tag}")
    if int(opts.get('ak',1)): E("s_waitcnt vmcnt(0)")
    if int(opts.get('ad',0)): E(f"s_sleep {opts['ad']}")
    if tag: L(f"L_na_{tag}")
    E("s_barrier")
def wait_for(nm):
    last=max(i for i,x in enumerate(q) if x==nm); n=len(q)-1-last
    E(f"s_waitcnt vmcnt({n})")
    stamp2({'wq':11,'clr':12,'k':13,'v':14,'wo':15,'w1':16,'w2':17,'c1':18}[nm])
EXP=opts.get('exp','')
SC=int(opts.get('sc',0)); YB=int(opts.get('yb',1)) or SC in (5,7,8)
if SC in (1,2) and not EXP: iss(ld_k)
L("L_common2")
lin(S['pQP'],QP,[(sHI,11),(sLO,8)]); lin(S['pAP'],AP,[("s4",14),(sLO,11),("s5",8)]); lin(S['pAST'],AST,[("s4",9),(sLO,6),("s5",3)])
lin(S['pOP'],OP,[("s5",16),(sETA,11)]); E(f"s_xor_b32 {S['pOP']}, {S['pOP']}, 0x20000"); lin(S['pF1'],F1P,[("s6",11)])
E(f"s_lshr_b32 {sC0}, s7, 3"); E(f"s_and_b32 {sC1}, s7, 7"); lin(S['pF2'],F2P,[(sC1,16),(sC0,11)])
lin(S['pQST'],QST,[("s2",7)]); lin(S['pF1ST'],F1ST,[("s6",7)])
E(f"s_lshl_b32 {sT}, {sW}, 6"); E(f"v_lshl_add_u32 v249, v{vG}, 4, {sT}")
E(f"v_lshl_add_u32 v{vAQ}, v{vN}, 16, v249")
E(f"s_lshl_b32 {sT}, {sW}, 9"); E(f"v_lshl_add_u32 v{vAL}, v{vG}, 7, {sT}"); E(f"v_lshl_add_u32 v{vAL}, v{vN}, 4, v{vAL}")
E(f"s_mul_i32 {sT}, s6, 1792"); E(f"s_sub_u32 {sT}, {F1CS-F1P:#x}, {sT}")
setexec(0x01000100,0x01000100); E(f"v_add_u32 v{vAL}, {sT}, v249"); fullexec()
if STAMP:
    for i in range(20): E(f"s_mov_b32 s{STS+i}, 0")
stamp(0)
if EXP:
    E("s_cmp_ge_u32 s3, 4"); E("s_cbranch_scc1 L_fin")
    E("s_waitcnt vmcnt(0)"); stamp(1)
    for i,f in enumerate([ld_k,ld_v,ld_wo,ld_w1,ld_w2,ld_wq,ld_k]):
        f(); E("s_waitcnt vmcnt(0)"); stamp(2+i)
    E("s_branch L_fin")
    for nm in ('k','v','wo','w1','w2'): q.extend([nm]*8)
vEP=248
E("s_cmp_ge_u32 s3, 4"); E("s_cbranch_scc1 L_comm")
def flag_store(word):
    lin(sT,FLG+word*4,[("s2",7)])
    setexec(1,0); E(f"buffer_store_dword v{vEP}, off, {WS}, {sT} sc1"); fullexec()
M8=(0x00FF00FF,0x00FF00FF); M9=(0x01FF01FF,0x01FF01FF)
def bump(keys):
    for k in keys: E(f"s_add_u32 {S[k]}, {S[k]}, {LS:#x}")
def l0only(tag):
    E(f"s_cmp_lg_u32 {sLAY}, 0"); E(f"s_cbranch_scc1 L_skip_{tag}")
def bounce(nm,R,natural,nxt=None):
    t=RD+8
    E(f"s_mul_i32 {sT}, {sW}, {BSZ}"); E(f"s_add_u32 {sT}, {sT}, {BOUNCE}")
    E(f"v_add_u32 v{t}, {sT}, v{vL16}")
    E(f"v_lshrrev_b32 v{t+1}, 2, v{vN}"); E(f"v_lshl_add_u32 v{t+1}, v{vG}, {3 if natural else 2}, v{t+1}")
    E(f"v_lshlrev_b32 v{t+1}, 6, v{t+1}"); E(f"v_and_b32 v{t+2}, 3, v{vLANE}"); E(f"v_lshl_add_u32 v{t+1}, v{t+2}, 4, v{t+1}")
    E(f"v_add_u32 v{t+1}, {sT}, v{t+1}")
    wait_for(nm)
    if nm=='v' and YB: E("s_barrier")
    if nxt: iss(nxt)
    for i in range(8): E(f"ds_write_b128 v{t}, {vr(R+4*i,4)} offset:{i*1024}")
    E("s_waitcnt lgkmcnt(0)")
    for tt in range(2):
        for k in range(4):
            for u in range(2):
                E(f"ds_read_b64_tr_b16 {vr(R+16*tt+4*k+2*u,2)}, v{t+1} offset:{k*2048+u*(256 if natural else 1024)+8*tt}")
    E("s_waitcnt lgkmcnt(0)")
def bounce_k():
    t=RD+8
    E(f"s_mul_i32 {sT}, {sW}, {BSZ}"); E(f"s_add_u32 {sT}, {sT}, {BOUNCE}")
    E(f"v_mul_u32_u24 v{t}, 272, v{vG}"); E(f"v_lshl_add_u32 v{t}, v{vN}, 4, v{t}"); E(f"v_add_u32 v{t}, {sT}, v{t}")
    E(f"v_mul_u32_u24 v{t+1}, 272, v{vN}"); E(f"v_lshl_add_u32 v{t+1}, v{vG}, 4, v{t+1}"); E(f"v_add_u32 v{t+1}, {sT}, v{t+1}")
    wait_for('k')
    if SC in (0,7,8): iss(ld_v)
    for i in range(8): E(f"ds_write_b128 v{t}, {vr(RK+4*i,4)} offset:{i*1088}")
    E("s_waitcnt lgkmcnt(0)")
    for tt in range(2):
        for k in range(4): E(f"ds_read_b128 {vr(RK+16*tt+4*k,4)}, v{t+1} offset:{tt*16*272+k*64}")
    E("s_waitcnt lgkmcnt(0)")
def read_b(base):
    for k in range(4): E(f"ds_read_b128 {vr(RB+4*k,4)}, v{vL16} offset:{base+k*1024}")
def mm(R):
    for k in range(4):
        E(f"s_waitcnt lgkmcnt({3-k})" if not STAMP else "s_waitcnt lgkmcnt(0)")
        for tt in range(2): mfma(RD+4*tt,R+16*tt+4*k,RB+4*k,None if k==0 else RD+4*tt)
def pack_store(src,va,so,mask):
    for i in range(4): E(f"v_cvt_pk_bf16_f32 v{RD+8+i}, v{src+2*i}, v{src+2*i+1}")
    if mask is M9: E(f"s_mov_b32 exec_lo, {sC0}"); E(f"s_mov_b32 exec_hi, {sC0}")
    else: setexec(*mask)
    E(f"buffer_store_dwordx4 {vr(RD+8,4)}, v{va}, {WS}, {so} offen sc1"); fullexec(); q.append('st')
def gemm_phase(R,p,va,so,mask):
    read_b(OPB[p]); mm(R); nop(8); pack_store(RD,va,so,mask)
E(f"s_mov_b32 {sC0}, 0x01FF01FF")
if SC==5: E("s_barrier"); iss(ld_k)
L("L_wloop")
l0only("wq"); bounce('wq',RWQ,False,ld_v if SC in (1,2,5) else ld_k); L("L_skip_wq")
E("s_barrier")
stamp(1)
gemm_phase(RWQ,0,vAQ,S['pQP'],M9)
stamp(2)
ack("q")
l0only("k"); bounce_k(); bounce('v',RV,False,ld_wo if SC!=1 else None); L("L_skip_k")
E("s_barrier")
stamp(3)
def at_bar(tag,f):
    l0only(tag); iss(f); L("L_skip_"+tag)
def l1clear():
    for i in range(4): E(f"v_mov_b32 v{240+i}, -1")
    E(f"s_lshl_b32 {sT}, s6, 2"); E(f"s_add_u32 {sT}, {sT}, {sW}"); E(f"s_mul_i32 {sT}, {sT}, 3072"); E(f"s_add_u32 {sT}, {sT}, {LS:#x}")
    E(f"v_mov_b32 v244, v{vL16}"); inact(sA1,244)
    for i in range(3): E(f"buffer_store_dwordx4 v[240:243], v244, {WS}, {sT} offen offset:{i*1024} sc1"); q.append('c1')
read_b(OPB[1])
if SC==1: at_bar("iwo",ld_wo)
if SC in (2,5,7,8): at_bar("iw1",ld_w1)
mm(RK);
E(f"s_mov_b32 {sT}, 0x3e0293ee")
nop(7)
d=RD; t=RD+8
E(f"v_max3_f32 v{t}, v{d}, v{d+1}, v{d+2}"); E(f"v_max3_f32 v{t+1}, v{d+3}, v{d+4}, v{d+5}")
E(f"v_max3_f32 v{t}, v{t}, v{d+6}, v{d+7}"); E(f"v_max_f32 v{t}, v{t}, v{t+1}")
def xrow(op,a,b):
    for sw in ("16","32"):
        E(f"v_mov_b32 v{b}, v{a}"); nop(2); E(f"v_permlane{sw}_swap_b32 v{a}, v{b}"); E(f"{op} v{a}, v{a}, v{b}")
xrow("v_max_f32",t,t+1)
E(f"v_mul_f32 v{t}, {sT}, v{t}")
for i in range(8): E(f"v_fma_f32 v{d+i}, v{d+i}, {sT}, -v{t}")
for i in range(8): E(f"v_exp_f32 v{d+i}, v{d+i}")
nop(1)
for i in range(4): E(f"v_cvt_pk_bf16_f32 v{t+4+i}, v{d+2*i}, v{d+2*i+1}")
E(f"s_lshl_b32 {sT}, {sW}, 10"); E(f"v_add_u32 v{t+2}, {sT}, v{vL16}")
E(f"ds_write_b128 v{t+2}, {vr(t+4,4)} offset:{PB}")
E(f"v_add_f32 v{d}, v{d}, v{d+1}"); E(f"v_add_f32 v{d+2}, v{d+2}, v{d+3}"); E(f"v_add_f32 v{d+4}, v{d+4}, v{d+5}"); E(f"v_add_f32 v{d+6}, v{d+6}, v{d+7}")
E(f"v_add_f32 v{d}, v{d}, v{d+2}"); E(f"v_add_f32 v{d+4}, v{d+4}, v{d+6}"); E(f"v_add_f32 v{t+1}, v{d}, v{d+4}")
xrow("v_add_f32",t+1,t+3)
E(f"s_lshl_b32 {sT}, {sW}, 3"); E(f"v_lshl_add_u32 v{t+2}, v{vN}, 5, {sT}")
setexec(0xFFFF,0); E(f"ds_write_b64 v{t+2}, {vr(t,2)} offset:{SMB}"); fullexec()
E("s_waitcnt lgkmcnt(0)")
E("s_barrier")
E(f"v_lshlrev_b32 v249, 5, v{vN}")
read_b(PB)
E(f"ds_read_b128 v[240:243], v249 offset:{SMB}"); E(f"ds_read_b128 v[244:247], v249 offset:{SMB+16}")
for k in range(4):
    E(f"s_waitcnt lgkmcnt({5-k})" if not STAMP else "s_waitcnt lgkmcnt(0)")
    for tt in range(2): mfma(RD+8*k+4*tt,RV+16*tt+4*k,RB+4*k,None)
E("s_waitcnt lgkmcnt(0)")
E("v_max3_f32 v248, v240, v242, v244"); E("v_max_f32 v248, v248, v246")
for i in range(4): E(f"v_sub_f32 v{240+2*i}, v{240+2*i}, v248")
for i in range(4): E(f"v_exp_f32 v{240+2*i}, v{240+2*i}")
nop(1)
E("v_mul_f32 v249, v240, v241")
for i in range(1,4): E(f"v_fmac_f32 v249, v{240+2*i}, v{241+2*i}")
for i in range(8): E(f"v_mul_f32 v{RD+i}, v240, v{RD+i}")
for k in range(1,4):
    for i in range(8): E(f"v_fmac_f32 v{RD+i}, v{240+2*k}, v{RD+8*k+i}")
pack_store(RD,vAQ,S['pAP'],M8)
E(f"v_lshlrev_b32 v240, 11, v{vN}")
E(f"s_lshl_b32 {sT}, {sW}, 1"); E(f"s_lshl_b32 exec_lo, 3, {sT}"); E("s_mov_b32 exec_hi, 0")
E(f"buffer_store_dwordx2 v[248:249], v240, {WS}, {S['pAST']} offen sc1"); fullexec(); q.append('st')
stamp(4)
ack("a")
l0only("wo")
JIT=int(opts.get('jit',0)); BOTH=int(opts.get('both',0))
if BOTH:
    if BOTH==2: l1clear()
    iss(ld_w1); iss(ld_w2)
    if BOTH==1: l1clear()
    bounce('wo',RWO,True); bounce('w1',RW1,False)
elif JIT: bounce('wo',RWO,True,ld_w1)
elif SC==0: bounce('wo',RWO,True,ld_w1); bounce('w1',RW1,False,None if 'w2d' in opts else ld_w2)
elif SC in (7,8): bounce('wo',RWO,True); bounce('w1',RW1,False,ld_w2 if SC==7 else None)
else:
    if SC==5: iss(ld_w2)
    l1clear(); bounce('wo',RWO,True)
if SC in (2,5): bounce('w1',RW1,False)
L("L_skip_wo")
E("s_barrier")
stamp(5)
if SC==1: at_bar("iw1",ld_w1)
if SC in (2,8) or opts.get('w2d')=='1': at_bar("iw2",ld_w2)
gemm_phase(RWO,2,vAL,S['pOP'],M8)
ack("o")
l0only("w1")
if opts.get('w2d')=='2': iss(ld_w2)
if SC in (0,7,8) and BOTH in (0,3): l1clear()
if JIT: bounce('w1',RW1,False,ld_w2); wait_for('c1')
elif SC==1: bounce('w1',RW1,False)
else: bounce('w2',RW2,False); E("s_waitcnt vmcnt(0)"); stamp2(18)
L("L_skip_w1")
E("s_barrier")
stamp(6)
if SC==1: at_bar("iw2",ld_w2)
E(f"s_cmp_eq_u32 {sA1}, 0"); E("s_cbranch_scc1 L_nof1")
gemm_phase(RW1,3,vAL,S['pF1'],M9); q.pop()
L("L_nof1")
if SC==1 or JIT: ack("f"); l0only("w2"); bounce('w2',RW2,False); L("L_skip_w2")
else: ack()
E("s_barrier")
stamp(7)
E(f"s_cmp_eq_u32 {sA2}, 0"); E("s_cbranch_scc1 L_nof2")
gemm_phase(RW2,4,vAL,S['pF2'],M8)
L("L_nof2")
stamp(8)
ack()
bump(['pQP','pAP','pAST','pOP','pF1','pF2']); E(f"s_mov_b32 {sC0}, 0x00FF00FF")
E(f"s_add_u32 {sLAY}, {sLAY}, 1"); E(f"s_cmp_lt_u32 {sLAY}, 2"); E("s_cbranch_scc1 L_wloop")
E("s_branch L_fin")
L("L_comm")
G=0; X=64; MP=72; A1=80; AG=88; D0=92; D1=96; D2=100; D3=104; T=108; AW=160
vG1,vCS,vST,vG3,vAST,vLW,vSTa,vOW,vONE=140,141,142,143,144,145,146,147,148
E(f"v_and_b32 v{T}, 7, v{vN}"); E(f"v_lshrrev_b32 v{T+1}, 3, v{vN}")
E(f"v_lshlrev_b32 v{vOW}, 11, v{T}"); E(f"v_lshl_add_u32 v{vOW}, v{vG}, 3, v{vOW}")
lin(sT,0,[(sLO,8),(sW,6)]); E(f"v_add_u32 v{vOW}, {sT}, v{vOW}")
E(f"buffer_load_dwordx2 v[{T+8}:{T+9}], v{vOW}, {SX}, 0 offen"); E(f"buffer_load_dwordx2 v[{T+10}:{T+11}], v{vOW}, {SX}, 0 offen offset:32")
E(f"s_mov_b32 {sT}, {EPO:#x}"); E(f"buffer_load_dword v{vEP}, off, {WS}, {sT} sc1")
for i in range(4): E(f"v_mov_b32 v{G+i}, -1")
E(f"s_cmp_lg_u32 {sW}, 1"); E("s_cbranch_scc1 L_cl2")
E(f"v_lshlrev_b32 v{T+2}, 4, v{vN}"); E(f"v_lshl_add_u32 v{T+3}, v{vG}, 16, v{T+2}")
E(f"buffer_store_dwordx4 {vr(G,4)}, v{T+3}, {WS}, {S['pQP']} offen sc1")
E(f"s_add_u32 {sT}, {S['pQP']}, 0x40000"); E(f"buffer_store_dwordx4 {vr(G,4)}, v{T+3}, {WS}, {sT} offen sc1")
E(f"s_add_u32 {sT}, {S['pQP']}, 0x80000"); E(f"v_add_u32 v{T+3}, {sT}, v{T+2}")
setexec(0xFF0000,0); E(f"v_add_u32 v{T+3}, {S['pQST']}, v{T+2}")
lin(sT,AST,[(sLO,11),("s4",9),("s5",6)]); setexec(0,0xF); E(f"v_add_u32 v{T+3}, {sT}, v{T+2}")
setexec(0xFFFFFF,0xF); E(f"buffer_store_dwordx4 {vr(G,4)}, v{T+3}, {WS}, 0 offen sc1"); fullexec()
L("L_cl2")
lin(sT,AP,[(sLO,16),("s4",14),("s5",11)])
E(f"s_cmp_eq_u32 {sW}, 0"); E(f"s_cselect_b32 {sT}, {S['pOP']}, {sT}")
E(f"s_cmp_eq_u32 {sW}, 2"); E(f"s_cselect_b32 {sT}, {S['pF1']}, {sT}")
E(f"s_cmp_eq_u32 {sW}, 3"); E(f"s_cselect_b32 {sT}, {S['pF2']}, {sT}")
for i in range(2): E(f"buffer_store_dwordx4 {vr(G,4)}, v{vL16}, {WS}, {sT} offen offset:{i*1024} sc1")
E(f"s_bitcmp1_b32 {sW}, 0"); E("s_cbranch_scc1 L_nsm")
lin(sT,F1CS,[("s6",8)])
E(f"s_cmp_eq_u32 {sW}, 0"); E(f"s_cselect_b32 {sT}, {S['pF1ST']}, {sT}"); E(f"s_cselect_b32 exec_lo, 0xff, -1"); E("s_and_b32 exec_lo, exec_lo, 0xffff"); E("s_mov_b32 exec_hi, 0")
E(f"buffer_store_dwordx4 {vr(G,4)}, v{vL16}, {WS}, {sT} offen sc1")
L("L_nsm"); fullexec()
if SC==5: E("s_barrier")
E(f"v_lshlrev_b32 v{vSTa}, 3, v{T}"); setexec(0xFFFFFFFF,0); E(f"v_add_u32 v{vSTa}, 4, v{vSTa}")
fullexec()
lin(S['gF2'],(F2P-LS)&0xffffffff,[(sLO,16)]); lin(S['gOP'],OP,[(sLO,16)]); lin(S['gQP'],QP,[(sLO,16),("s4",14)]); lin(S['gQCS'],QP+8*65536,[("s4",14)])
lin(S['gQST'],QST,[(sHI,10),(sLO,3)]); lin(S['gAP'],AP,[(sLO,16),("s4",14)]); lin(S['gAST'],AST,[(sLO,11),("s4",9)])
E(f"s_lshr_b32 {sC0}, s7, 3")
lin(S['gF1'],F1P,[(sC0,14)]); lin(S['gF1CS'],F1CS,[(sC0,11)]); lin(S['gF1ST'],F1ST,[(sC0,10)])
E(f"v_and_b32 v{T+3}, 2, v{vG}"); E(f"v_add_u32 v{T+3}, v{T+3}, v{T+1}")
E(f"v_and_b32 v{T+4}, 1, v{vG}")
E(f"s_lshl_b32 {sT}, {sW}, 9"); E(f"v_lshl_add_u32 v{vG1}, v{T+3}, 11, {sT}"); E(f"v_lshl_add_u32 v{vG1}, v{T+4}, 7, v{vG1}"); E(f"v_lshl_add_u32 v{vG1}, v{T}, 4, v{vG1}")
E(f"s_lshl_b32 {sT}, {sW}, 6"); E(f"v_lshl_add_u32 v{vCS}, v{T+3}, 8, {sT}"); E(f"v_lshl_add_u32 v{vCS}, v{T+4}, 4, v{vCS}")
E(f"v_lshl_add_u32 v{vST}, v{vG}, 1, v{T+1}"); E(f"v_lshlrev_b32 v{vST}, 7, v{vST}")
E(f"v_lshl_add_u32 v149, v{T}, 3, v{vST}")
E(f"s_lshl_b32 {sT}, {sW}, 12"); E(f"v_lshl_add_u32 v{vG3}, v{vG}, 9, {sT}"); E(f"v_lshl_add_u32 v{vG3}, v{vN}, 4, v{vG3}")
E(f"s_lshl_b32 {sT}, {sW}, 7"); E(f"v_lshl_add_u32 v{vAST}, v{T+1}, 6, {sT}"); E(f"v_lshl_add_u32 v{vAST}, v{vG}, 4, v{vAST}")
E(f"s_lshl_b32 {sT}, {sW}, 5"); E(f"v_lshl_add_u32 v{vLW}, v{vG}, 3, {sT}"); E(f"v_lshl_add_u32 v{vLW}, v{vN}, 8, v{vLW}")
E(f"s_lshl_b32 {sT}, {sW}, 10"); E(f"v_add_u32 v150, {sT}, v{vL16}")
E(f"v_mov_b32 v{vONE}, 1.0"); lin(sC0,4,[(sW,13)]); E(f"v_lshl_add_u32 v188, v{vLANE}, 7, {sC0}")
E(f"v_and_b32 v{T+5}, 1, v{vN}"); E(f"v_lshlrev_b32 v{T+5}, 4, v{T+5}"); E(f"v_mov_b32 v{T+6}, 0xffff"); E(f"v_lshlrev_b32 v{T+6}, v{T+5}, v{T+6}")
E(f"v_lshrrev_b32 v{T+5}, 1, v{vN}")
for i in range(8):
    E(f"v_cmp_eq_u32 vcc, {i}, v{T+5}"); nop(2); E(f"v_cndmask_b32 v{MP+i}, 0, v{T+6}, vcc")
for i in range(8): E(f"v_and_b32 v{A1+i}, 0x3f803f80, v{MP+i}")
E(f"v_cmp_eq_u32 vcc, 0, v{T+4}"); nop(2)
for i in range(4): E(f"v_cndmask_b32 v{AG+i}, v{A1+4+i}, v{A1+i}, vcc")
E("s_waitcnt vmcnt(5)"); E(f"s_cmp_eq_u32 {sW}, 1"); E("s_cbranch_scc1 L_x0p")
E("s_waitcnt vmcnt(3)"); E(f"s_cmp_lg_u32 {sW}, 3"); E("s_cbranch_scc1 L_x0p")
E("s_waitcnt vmcnt(2)"); L("L_x0p"); E(f"v_add_u32 v{vEP}, 1, v{vEP}")
E("s_branch L_x0")
uid=[0]
def gld(dst,va,so,off,sel):
    if sel:
        uid[0]+=1
        E(f"v_max3_u32 v190, v{dst}, v{dst+1}, v{dst+2}"); E(f"v_max_u32 v190, v190, v{dst+3}"); E("v_cmp_eq_u32 vcc, -1, v190")
        E("s_mov_b64 exec, vcc"); E(f"s_cbranch_execz L_sl{uid[0]}")
    E(f"buffer_load_dwordx4 {vr(dst,4)}, v{va}, {WS}, {so} offen offset:{off} sc1")
    if sel: L(f"L_sl{uid[0]}"); fullexec()
def poll_end(tag,regs,loads):
    E(f"v_cmp_u_f32 {sP}, v{regs[0]}, v{regs[1]}")
    if len(regs)>2:
        E(f"v_cmp_u_f32 vcc, v{regs[2]}, v{regs[3]}"); E(f"s_or_b64 {sP}, {sP}, vcc")
    E(f"s_cmp_eq_u64 {sP}, 0"); E(f"s_cbranch_scc1 L_pd_{tag}")
    E(f"s_sub_u32 {sBUD}, {sBUD}, 1"); E(f"s_cmp_lt_i32 {sBUD}, 0"); E(f"s_cbranch_scc1 L_pd_{tag}")
    if int(opts.get('slp',0)): E(f"s_sleep {opts['slp']}")
    loads(True); E("s_waitcnt vmcnt(0)"); E(f"s_branch L_pm_{tag}")
    L(f"L_pd_{tag}")
def ror8(r,n):
    for i in range(n): E(f"v_add_f32_dpp v{r+i}, v{r+i}, v{r+i} row_ror:8 row_mask:0xf bank_mask:0xf")
def g1(tag,key,ng):
    def loads(sel):
        E(f"s_mov_b32 {sT}, {S[key]}")
        for i in range(ng):
            for h in range(2): gld(G+8*i+4*h,vG1,sT,h*256,sel)
            if i<ng-1: E(f"s_add_u32 {sT}, {sT}, 8192")
    loads(False); L(f"L_pm_{tag}")
    for i in range(ng):
        for h in range(2):
            E(f"s_waitcnt vmcnt({2*ng-1-2*i-h})"); mfma(D0+4*h,AG,G+8*i+4*h,None if i==0 else D0+4*h)
    nop(8); poll_end(tag,[D0,D1],loads); ror8(D0,8)
    for i in range(8): E(f"v_add_f32 v{D0+i}, v{D0+i}, v{X+i}")
    for i in range(4): E(f"v_cvt_pk_bf16_f32 v{T+8+i}, v{D0+2*i}, v{D0+2*i+1}")
def x_out(p):
    for i in range(4):
        E(f"v_lshlrev_b32 v{X+2*i}, 16, v{T+8+i}"); E(f"v_and_b32 v{X+2*i+1}, 0xffff0000, v{T+8+i}")
    setexec(0xFF00FF00,0xFF00FF00)
    for i in range(4): E(f"v_mov_b32 v{T+8+i}, 0x3f803f80")
    fullexec()
    E(f"ds_write_b128 v150, {vr(T+8,4)} offset:{OPB[p]}"); E("s_waitcnt lgkmcnt(0)")
def gram(tag,p,key):
    for k in range(4): E(f"ds_read_b128 {vr(G+4*k,4)}, v{vL16} offset:{OPB[p]+k*1024}")
    E("s_waitcnt lgkmcnt(0)")
    for k in range(4): mfma(D0,G+4*k,G+4*k,None if k==0 else D0)
    nop(8)
    for i in range(1,4):
        setexec((1<<i)|(1<<(20+i)),0); E(f"v_mov_b32 v{D0}, v{D0+i}")
    setexec(0x00F0000F,0xFF); E(f"buffer_store_dword v{D0}, v{vSTa}, {WS}, {S[key]} offen sc1"); fullexec()
def ln_stats(r):
    ror8(D2,1); ror8(D3,1)
    E(f"s_mov_b32 {sT}, 0x3a800000")
    E(f"v_mul_f32 v{D2}, {sT}, v{D2}"); E(f"v_mul_f32 v{D3}, {sT}, v{D3}")
    E(f"v_fma_f32 v{D3}, -v{D2}, v{D2}, v{D3}"); E(f"v_max_f32 v{D3}, 0, v{D3}"); E(f"v_add_f32 v{D3}, 0x3727c5ac, v{D3}")
    E(f"v_rsq_f32 v{D3}, v{D3}")
def stat_mfma(r):
    E(f"v_mfma_f32_16x16x4_f32 {vr(D2,4)}, v{vONE}, v{r}, 0"); E(f"v_mfma_f32_16x16x4_f32 {vr(D3,4)}, v{vONE}, v{r+1}, 0")
L("L_cloop")
E(f"s_cmp_lt_u32 {sLAY}, 2"); E("s_cbranch_scc1 L_nf"); E(f"s_cmp_lg_u32 {sHI}, {sW}"); E("s_cbranch_scc1 L_fin"); L("L_nf")
g1("f2",'gF2',7)
E(f"s_cmp_lt_u32 {sLAY}, 2"); E("s_cbranch_scc1 L_x0")
setexec(*M8)
E(f"buffer_store_dwordx2 v[{T+8}:{T+9}], v{vOW}, {SOUT}, 0 offen"); E(f"buffer_store_dwordx2 v[{T+10}:{T+11}], v{vOW}, {SOUT}, 0 offen offset:32")
fullexec(); E("s_branch L_fin")
L("L_x0")
x_out(0)
stamp(1)
l0only("fs"); E(f"s_cmp_lg_u32 {sW}, 1"); E("s_cbranch_scc1 L_skip_fs")
E("s_waitcnt vmcnt(0)"); flag_store(0); stamp2(11); L("L_skip_fs")
E("s_barrier")
E(f"s_cmp_lg_u32 {sW}, 0"); E("s_cbranch_scc1 L_ng0"); gram("q",0,'pQST'); L("L_ng0")
stamp(7)
def flagpoll(tag,lo,hi,T=T,pre=False):
    E(f"s_mov_b32 {sT}, {FLG:#x}"); setexec(lo,hi)
    if pre: E(f"s_branch L_fc{tag}")
    L(f"L_fl{tag}")
    E(f"buffer_load_dword v{T+1}, v{T}, {WS}, {sT} offen sc1"); L(f"L_fc{tag}"); E("s_waitcnt vmcnt(0)")
    E(f"v_cmp_ne_u32 {sP}, v{vEP}, v{T+1}"); E(f"s_cmp_eq_u64 {sP}, 0"); E(f"s_cbranch_scc1 L_fd{tag}")
    E(f"s_sleep {opts.get('fs','2')}")
    E(f"s_sub_u32 {sBUD}, {sBUD}, 1"); E(f"s_cmp_gt_i32 {sBUD}, 0"); E(f"s_cbranch_scc1 L_fl{tag}")
    L(f"L_fd{tag}"); fullexec()
E("s_barrier")
l0only("flag")
lin(sC0,0,[("s4",13),(sW,11)]); E(f"v_lshl_add_u32 v{T}, v{vN}, 7, {sC0}")
E(f"s_lshl_b32 {sC0}, {sHI}, 10"); setexec(0xFF0000,0); E(f"v_lshl_add_u32 v{T}, v{vN}, 7, {sC0}"); fullexec()
flagpoll("g",0xFFFFFF,0)
L("L_skip_flag")
def l0delay(tag):
    if int(opts.get('l0d',0)): l0only("dl"+tag); E(f"s_sleep {opts['l0d']}"); L("L_skip_dl"+tag)
stamp(2)
CQ=176; CF=180
def ld_q(sel):
    l0only(f"cq0{sel}")
    for p in range(2):
        for i in range(2): gld(G+16+8*p+4*i,vG3,S['gQCS'],p*2048+i*256,sel)
    L(f"L_skip_cq0{sel}")
    E(f"buffer_load_dwordx2 v[{T}:{T+1}], v{vST}, {WS}, {S['gQST']} offen sc1")
    for p in range(2):
        for i in range(2): gld(G+8*p+4*i,vG3,S['gQP'],p*2048+i*256,sel)
ld_q(False)
if YB: l0only("y"); E("s_barrier"); L("L_skip_y")
L("L_pm_q")
E("s_waitcnt vmcnt(4)"); stat_mfma(T)
l0only("cq")
for c in range(4): mfma(CQ,A1+4*(c//2),G+16+4*c,None if c==0 else CQ)
L("L_skip_cq")
nop(8); ln_stats(T)
E(f"v_add_f32 v{T+2}, v{D3+1}, v{D2+1}")
for i in range(4): E(f"v_mul_f32 v{D0+i}, -v{D2}, v{CQ+i}")
nop(1)
for c in range(4):
    E(f"s_waitcnt vmcnt({3-c})"); mfma(D0,A1+4*(c//2),G+4*c,D0)
nop(8)
for i in range(4): E(f"v_mul_f32 v{D0+i}, v{D3}, v{D0+i}")
poll_end("q",[D0,T+2],ld_q)
def small_out(p):
    for i in range(2): E(f"v_cvt_pk_bf16_f32 v{T+8+i}, v{D0+2*i}, v{D0+2*i+1}")
    E(f"ds_write_b64 v{vLW}, {vr(T+8,2)} offset:{OPB[p]}"); E("s_waitcnt lgkmcnt(0)")
small_out(1)
stamp(3)
E("s_barrier")
l0only("c1")
E(f"s_cmp_lg_u32 {sW}, 1"); E("s_cbranch_scc1 L_skip_c1"); flag_store(1)
L("L_skip_c1")
E("s_barrier")
E("s_barrier")
l0delay("a")
stamp(8)
def ld_a(sel):
    E(f"buffer_load_dwordx4 {vr(T,4)}, v{vAST}, {WS}, {S['gAST']} offen sc1")
    for p in range(2):
        for i in range(2): gld(G+8*p+4*i,vG3,S['gAP'],p*2048+i*256,sel)
ld_a(False); L("L_pm_a")
E("s_waitcnt vmcnt(4)")
E(f"v_max_f32 v{T+4}, v{T}, v{T+2}"); xrow("v_max_f32",T+4,T+5)
E(f"v_sub_f32 v{T}, v{T}, v{T+4}"); E(f"v_sub_f32 v{T+2}, v{T+2}, v{T+4}"); E(f"v_exp_f32 v{T}, v{T}"); E(f"v_exp_f32 v{T+2}, v{T+2}"); nop(1)
E(f"v_cvt_pk_bf16_f32 v{T}, v{T}, v{T}"); E(f"v_cvt_pk_bf16_f32 v{T+2}, v{T+2}, v{T+2}")
for p in range(2):
    for i in range(2):
        for r in range(4): E(f"v_and_b32 v{AW+8*p+4*i+r}, v{MP+4*p+r}, v{T+2*i}")
E(f"v_and_b32 v{T}, 0xffff0000, v{T}"); E(f"v_and_b32 v{T+2}, 0xffff0000, v{T+2}")
for c in range(4):
    E(f"s_waitcnt vmcnt({3-c})"); mfma(D0,AW+4*c,G+4*c,None if c==0 else D0)
E(f"v_mul_f32 v{T+4}, v{T}, v{T+1}"); E(f"v_fmac_f32 v{T+4}, v{T+2}, v{T+3}"); xrow("v_add_f32",T+4,T+5)
E(f"v_rcp_f32 v{T+4}, v{T+4}"); nop(1)
E(f"v_readlane_b32 {sC0}, v{T+4}, 0"); E(f"v_readlane_b32 {sC1}, v{T+4}, 8"); nop(2)
E(f"v_mov_b32 v{T+4}, {sC1}"); setexec(0xFFFFFFFF,0); E(f"v_mov_b32 v{T+4}, {sC0}"); fullexec()
for i in range(4): E(f"v_mul_f32 v{D0+i}, v{T+4}, v{D0+i}")
poll_end("a",[D0,D0+1],ld_a)
l0only("c3")
E(f"s_mov_b32 {sT}, {FLG:#x}"); E(f"buffer_load_dword v189, v188, {WS}, {sT} offen sc1")
L("L_skip_c3")
small_out(2)
stamp(4)
E("s_barrier")
l0only("c2"); flagpoll("a",0xFFFFFFFF,0xFFFFFFFF,188,True); L("L_skip_c2")
E("s_barrier")
E(f"s_add_u32 {sT}, s2, {sW}"); E(f"s_add_u32 {sT}, {sT}, {sLAY}"); E(f"s_cmp_lg_u32 {sT}, 0"); E("s_cbranch_scc1 L_nep")
E(f"s_mov_b32 {sT}, {EPO:#x}"); setexec(1,0); E(f"buffer_store_dword v{vEP}, off, {WS}, {sT} sc1"); fullexec()
L("L_nep")
l0delay("o")
g1("o",'gOP',8)
x_out(3)
stamp(5)
E("s_barrier")
E(f"s_cmp_lg_u32 {sW}, 0"); E("s_cbranch_scc1 L_ng1"); E(f"s_cmp_eq_u32 {sA1}, 0"); E("s_cbranch_scc1 L_ng1"); gram("f",3,'pF1ST'); L("L_ng1")
E("s_barrier")
if SC==1 or JIT: l0delay("f")
E(f"s_cmp_eq_u32 {sA2}, 0"); E("s_cbranch_scc1 L_nog2")
E0,E1=AW,AW+4
def ld_h(sel):
    l0only(f"cf0{sel}")
    for i in range(2):
        for h in range(2): gld(G+16+8*i+4*h,vCS,S['gF1CS'],i*1024+h*32,sel)
    L(f"L_skip_cf0{sel}")
    E(f"buffer_load_dwordx2 v[{T}:{T+1}], v149, {WS}, {S['gF1ST']} offen sc1")
    E(f"s_add_u32 {sT}, {S['gF1']}, 8192")
    for i in range(2):
        for h in range(2): gld(G+8*i+4*h,vG1,S['gF1'] if i==0 else sT,h*256,sel)
ld_h(False); L("L_pm_h")
E("s_waitcnt vmcnt(4)"); stat_mfma(T)
l0only("cf")
for c in range(4): mfma(CF+4*(c%2),AG,G+16+4*c,None if c<2 else CF+4*(c%2))
L("L_skip_cf")
nop(8); ln_stats(T)
E(f"v_add_f32 v{T+2}, v{D3+1}, v{D2+1}")
for i in range(8): E(f"v_mul_f32 v{D0+i}, -v{D2}, v{CF+i}")
nop(1)
for c in range(4):
    E(f"s_waitcnt vmcnt({3-c})"); mfma(D0+4*(c%2),AG,G+4*c,D0+4*(c%2))
nop(8)
poll_end("h",[D0,D1,T+2,T+2],ld_h)
ror8(D0,8)
E(f"s_mov_b32 {sT}, 0xbfb8aa3b")
for i in range(8): E(f"v_mul_f32 v{D0+i}, v{D3}, v{D0+i}")
for i in range(8): E(f"v_mul_f32 v{E0+i}, {sT}, v{D0+i}")
for i in range(8): E(f"v_exp_f32 v{E0+i}, v{E0+i}")
for i in range(8): E(f"v_add_f32 v{E0+i}, 1.0, v{E0+i}")
for i in range(8): E(f"v_rcp_f32 v{E0+i}, v{E0+i}")
for i in range(8): E(f"v_mul_f32 v{D0+i}, v{E0+i}, v{D0+i}")
for i in range(4): E(f"v_cvt_pk_bf16_f32 v{T+8+i}, v{D0+2*i}, v{D0+2*i+1}")
E(f"ds_write_b128 v150, {vr(T+8,4)} offset:{OPB[4]}"); E("s_waitcnt lgkmcnt(0)")
L("L_nog2")
stamp(6)
E("s_barrier")
E("s_barrier")
bump(['pQST','pF1ST','gF2','gOP','gQP','gQCS','gQST','gAP','gAST','gF1','gF1CS','gF1ST'])
E(f"s_add_u32 {sLAY}, {sLAY}, 1"); E("s_branch L_cloop")
L("L_fin")
if STAMP:
    E(f"s_mov_b32 {sLAY}, 1"); stamp(9)
    E(f"s_mov_b32 s{STS+9}, {sBUD}")
    E("s_lshl_b32 s4, s2, 3"); E("s_add_u32 s4, s4, s3"); E("s_lshl_b32 s4, s4, 7"); E(f"s_add_u32 s4, s4, {STB_WS:#x}")
    E("v_mov_b32 v1, 0"); setexec(1,0)
    for i in range(20):
        E(f"v_mov_b32 v2, s{STS+i}"); E(f"buffer_store_dword v2, v1, {WS}, s4 offen offset:{4*i}"); nop(2)
    E("s_waitcnt vmcnt(0)")
L("L_end")
E("s_endpgm")
out.append(""".section .rodata,"a"
.p2align 6
.amdhsa_kernel %s_kernel
  .amdhsa_next_free_vgpr 256
  .amdhsa_next_free_sgpr 102
  .amdhsa_accum_offset 256
  .amdhsa_group_segment_fixed_size 0
  .amdhsa_kernarg_size 88
  .amdhsa_user_sgpr_count 2
  .amdhsa_user_sgpr_kernarg_segment_ptr 1
  .amdhsa_system_sgpr_workgroup_id_x 1
.end_amdhsa_kernel"""%NAME)
open(sys.argv[1],"w").write("\n".join(out)+"\n")
```

```python
import sys
NAME="interleave_layers__sliding_block_cached__dense_activation_silu__decode"
opts=dict(a.split('=') for a in sys.argv[2:])
STAMP=int(opts.get('stamp',0))
STAGE=int(opts.get('stage',0))
NT=opts.get('nt','1')=='1'
out=[]
def E(s): out.append("    "+s)
def L(s): out.append(s+":")
def C(s): out.append("    ; "+s)
def nop(n): E(f"s_nop {n-1}")
LS=0x300000
AP,OP,F1P,F2P,QST,F1ST,AST,QP,F1CS=0,0x80000,0x100000,0x180000,0x200000,0x208000,0x210000,0x214000,0x2A4000
FLG,EPO=0x2C0000,0x2D0000
STB_WS=0x600000
WS_REC=0x800000
OPB=[0,4096,8192,12288,16384]; PB=20480; SMB=24576; BOUNCE=25600; BSZ=8704
LDS=61440
WS="s[8:11]"; SWQ="s[12:15]"; SK="s[16:19]"; SV="s[20:23]"; SWO="s[24:27]"; SW1="s[28:31]"; SW2="s[32:35]"
SX="s[36:39]"; SOUT="s[40:43]"; SDBG="s[44:47]"
sW,sLO,sHI,sLAY,sBUD,sT,sT2,sETA="s48","s49","s50","s51","s52","s53","s54","s55"
sA1,sA2="s56","s57"
offs=["pQP","pAP","pAST","pOP","pF1","pF2","pQST","pF1ST","gF2","gOP","gQP","gQCS","gQST","gAP","gAST","gF1","gF1CS","gF1ST"]
S={n:f"s{58+i}" for i,n in enumerate(offs)}
sC0,sC1="s76","s77"; sP="s[78:79]"; sP0,sP1="s78","s79"
STS=80
nst=[0]
def stamp(i):
    if STAMP:
        E("s_memrealtime s[100:101]"); E("s_waitcnt lgkmcnt(0)")
        E(f"s_cmp_eq_u32 {sLAY}, 0"); E(f"s_cselect_b32 s{STS+i}, s100, s{STS+i}");
        if STAMP!=2 or i==9: E(f"s_cselect_b32 s{STS+10+i}, s{STS+10+i}, s100")
def stamp2(i):
    if STAMP==2: E("s_memrealtime s[100:101]"); E("s_waitcnt lgkmcnt(0)"); E(f"s_mov_b32 s{STS+i}, s100")
def setexec(lo,hi):
    E(f"s_mov_b32 exec_lo, {lo:#x}"); E(f"s_mov_b32 exec_hi, {hi:#x}")
def fullexec(): E("s_mov_b64 exec, -1")
def vr(a,n): return f"v[{a}:{a+n-1}]"
def mfma(d,a,b,c): E(f"v_mfma_f32_16x16x32_bf16 {vr(d,4)}, {vr(a,4)}, {vr(b,4)}, {('0' if c is None else vr(c,4))}")
def srd(s,ptr,n):
    b=int(s[2:s.index(':')])
    E(f"s_mov_b32 s{b}, s{ptr}"); E(f"s_and_b32 s{b+1}, s{ptr+1}, 0xffff"); E(f"s_mov_b32 s{b+2}, {n:#x}"); E(f"s_mov_b32 s{b+3}, 0x20000")
vL16,vAQ,vAL,vLANE,vN,vG=255,254,253,252,251,250
hdr=open(f"cdna_kernels/{NAME}.s.ref").read().split("; Override")[0]
out.append(hdr.rstrip())
out.append(f"; @launch grid=(256,1,1) block=(512,1,1) lds={LDS}")
out.append('.amdgcn_target "amdgcn-amd-amdhsa--gfx950"\n.text\n.globl %s_kernel\n.p2align 8\n.type %s_kernel,@function\n%s_kernel:'%(NAME,NAME,NAME))
E("s_cmp_ge_u32 s2, 256"); E("s_cbranch_scc1 L_end")
if opts.get('perm'): E("s_lshr_b32 s3, s2, 3"); E("s_and_b32 s2, s2, 7"); E("s_lshl_b32 s2, s2, 5"); E("s_or_b32 s2, s2, s3")
E("s_load_dwordx16 s[80:95], s[0:1], 0")
E("s_load_dwordx4 s[96:99], s[0:1], 64")
E("s_load_dwordx2 s[100:101], s[0:1], 80")
E("v_lshrrev_b32 v1, 6, v0"); E(f"v_and_b32 v{vLANE}, 63, v0")
E(f"s_and_b32 {sLO}, s2, 7"); E(f"v_readfirstlane_b32 s3, v1"); E(f"s_lshr_b32 {sHI}, s2, 3")
E(f"s_and_b32 {sW}, s3, 3")
E(f"v_lshlrev_b32 v{vL16}, 4, v{vLANE}"); E(f"v_and_b32 v{vN}, 15, v{vLANE}"); E(f"v_lshrrev_b32 v{vG}, 4, v{vLANE}")
E(f"s_lshr_b32 s4, {sHI}, 3")
E(f"s_and_b32 s5, {sHI}, 7")
E(f"s_lshl_b32 {sETA}, s4, 3"); E(f"s_add_u32 {sETA}, {sETA}, {sLO}")
E(f"s_add_u32 {sT}, {sHI}, 1"); E(f"s_and_b32 {sT}, {sT}, 3"); E(f"s_and_b32 {sT2}, {sHI}, 28"); E(f"s_add_u32 s6, {sT}, {sT2}")
E("s_cmp_lt_u32 s6, 28"); E(f"s_cselect_b32 {sA1}, 1, 0"); E("s_lshl_b32 s6, s6, 3"); E(f"s_add_u32 s6, s6, {sLO}")
E(f"s_xor_b32 {sT}, {sT}, 2"); E(f"s_add_u32 {sT2}, {sT2}, 4"); E(f"s_and_b32 {sT2}, {sT2}, 28"); E(f"s_add_u32 {sT}, {sT}, {sT2}")
E(f"s_mul_i32 s7, {sLO}, 28"); E(f"s_add_u32 s7, s7, {sT}"); E(f"s_lshl_b32 {sT2}, {sT}, 3"); E(f"s_add_u32 {sT2}, {sT2}, {sLO}")
E(f"s_cmp_lt_u32 {sT}, 28"); E(f"s_cselect_b32 {sA2}, 1, 0"); E(f"s_cselect_b32 s7, s7, {sT2}")
E(f"s_mov_b32 {sLAY}, 0"); E(f"s_mov_b32 {sBUD}, 40000")
E("s_waitcnt lgkmcnt(0)")
srd(SWQ,86,1024*4096*2)
E("s_cmp_ge_u32 s3, 4"); E("s_cbranch_scc1 L_common")
def tile_voff(v,stride):
    E(f"v_lshrrev_b32 v{v}, 2, v{vLANE}"); E(f"v_mul_u32_u24 v{v}, {stride}, v{v}")
    E(f"v_and_b32 v{v+1}, 3, v{vLANE}"); E(f"v_lshl_add_u32 v{v}, v{v+1}, 4, v{v}")
    E(f"s_lshl_b32 {sT2}, {sW}, 6"); E(f"v_add_u32 v{v}, {sT2}, v{v}")
SWZ=int(opts.get('swz',0))
def swz_fix():
    if SWZ==1:
        E(f"s_bfe_u32 {sT2}, {sT}, 0x20008"); E(f"s_sub_u32 {sT2}, {sW}, {sT2}"); E(f"s_mul_i32 {sT2}, {sT2}, 192"); E(f"s_add_u32 {sT}, {sT}, {sT2}")
    if SWZ==2:
        E(f"s_bfe_u32 {sT2}, {sT}, 0x10008"); E(f"s_lshl_b32 {sT2}, {sT2}, 7"); E(f"s_sub_u32 {sT}, {sT}, {sT2}")
        E(f"s_lshr_b32 {sT2}, {sW}, 1"); E(f"s_lshl_b32 {sT2}, {sT2}, 7"); E(f"s_add_u32 {sT}, {sT}, {sT2}")
def tile_loads(dst,v,srdn,step):
    if step>4096: swz_fix()
    for i in range(8):
        E(f"buffer_load_dwordx4 {vr(dst+4*i,4)}, v{v}, {srdn}, {sT} offen"+(" nt" if NT and (int(opts.get('ntm','63'))>>(dst//32))&1 else ""))
        if i<7: E(f"s_add_u32 {sT}, {sT}, {step}")
RWQ,RK,RV,RWO,RW1,RW2,RB,RD=0,32,64,96,128,160,192,208
def ld_wq():
    tile_voff(RD,8192); E(f"s_lshl_b32 {sT}, {sLO}, 20"); E(f"s_lshl_b32 {sT2}, {sHI}, 8"); E(f"s_add_u32 {sT}, {sT}, {sT2}")
    tile_loads(RWQ,RD,SWQ,16*8192)
ld_wq()
L("L_common")
E(f"s_mov_b32 s1, {EPO:#x}"); E("s_load_dword s0, s[100:101], s1")
srd(WS,100,WS_REC); srd(SK,82,8*4*4096*128*2); srd(SV,84,8*4*4096*128*2); srd(SWO,88,4096*1024*2)
srd(SW1,92,1024*3584*2); srd(SW2,94,3584*1024*2); srd(SX,80,16384); srd(SOUT,96,16384); srd(SDBG,98,256)
def lin(dst,base,terms):
    E(f"s_mov_b32 {dst}, {base:#x}")
    for r,sh in terms:
        E(f"s_lshl_b32 {sT2}, {r}, {sh}"); E(f"s_add_u32 {dst}, {dst}, {sT2}")
E("s_cmp_ge_u32 s3, 4"); E("s_cbranch_scc1 L_common2")
def kv_base():
    lin(sT,3072*256,[(sLO,22),("s4",20),("s5",15)])
def ld_k():
    kv_base(); E(f"s_lshl_b32 {sT2}, {sW}, 13"); E(f"s_add_u32 {sT}, {sT}, {sT2}")
    tile_loads(RK,vL16,SK,1024)
def ld_v():
    tile_voff(RD+2,256); kv_base(); tile_loads(RV,RD+2,SV,16*256)
def ld_wo():
    tile_voff(RD+4,2048); lin(sT,0,[(sETA,18),("s5",8)]); E(f"s_xor_b32 {sT}, {sT}, 0x200"); tile_loads(RWO,RD+4,SWO,16*2048)
def inact(flag,v):
    E(f"s_cmp_eq_u32 {flag}, 1"); E(f"s_cselect_b32 {sT}, {sT}, 0"); E(f"s_cselect_b32 {sT2}, 0, 0x40000000"); E(f"v_or_b32 v{v}, {sT2}, v{v}")
def ld_w1():
    tile_voff(RD+6,7168); E(f"s_mul_i32 {sT}, {sLO}, {128*7168}"); E(f"s_lshr_b32 {sT2}, s6, 3"); E(f"s_lshl_b32 {sT2}, {sT2}, 8"); E(f"s_add_u32 {sT}, {sT}, {sT2}")
    inact(sA1,RD+6); tile_loads(RW1,RD+6,SW1,16*7168)
def ld_w2():
    tile_voff(RD+4,2048); E(f"s_lshr_b32 {sT}, s7, 3"); E(f"s_lshl_b32 {sT}, {sT}, 18"); E(f"s_and_b32 {sT2}, s7, 7"); E(f"s_lshl_b32 {sT2}, {sT2}, 8"); E(f"s_add_u32 {sT}, {sT}, {sT2}"); inact(sA2,RD+4); tile_loads(RW2,RD+4,SW2,16*2048)
sched={0:[[ld_k,ld_v,ld_wo,ld_w1,ld_w2],[],[],[],[]],
       1:[[ld_k,ld_v],[ld_wo],[ld_w1],[ld_w2],[]],
       2:[[ld_k],[ld_v],[ld_wo],[ld_w1],[ld_w2]],
       3:[[ld_k,ld_v],[ld_wo,ld_w1],[ld_w2],[],[]],4:[[],[],[],[],[]]}[4]
order=['wq']; names={ld_k:'k',ld_v:'v',ld_wo:'wo',ld_w1:'w1',ld_w2:'w2'}
q=['wq']*8
def issue(pt):
    for f in sched[pt]:
        f(); q.extend([names[f]]*8)
def iss(f):
    f(); q.extend([names[f]]*8)
def ack(tag=None):
    if tag: E(f"s_cmp_eq_u32 {sLAY}, 0"); E(f"s_cbranch_scc1 L_na_{tag}")
    if int(opts.get('ak',1)): E("s_waitcnt vmcnt(0)")
    if int(opts.get('ad',0)): E(f"s_sleep {opts['ad']}")
    if tag: L(f"L_na_{tag}")
    E("s_barrier")
def wait_for(nm):
    last=max(i for i,x in enumerate(q) if x==nm); n=len(q)-1-last
    E(f"s_waitcnt vmcnt({n})")
    stamp2({'wq':11,'clr':12,'k':13,'v':14,'wo':15,'w1':16,'w2':17,'c1':18}[nm])
EXP=opts.get('exp','')
SC=int(opts.get('sc',0)); YB=int(opts.get('yb',1)) or SC in (5,7,8)
if SC in (1,2) and not EXP: iss(ld_k)
L("L_common2")
lin(S['pQP'],QP,[(sHI,11),(sLO,8)]); lin(S['pAP'],AP,[("s4",14),(sLO,11),("s5",8)]); lin(S['pAST'],AST,[("s4",9),(sLO,6),("s5",3)])
lin(S['pOP'],OP,[("s5",16),(sETA,11)]); E(f"s_xor_b32 {S['pOP']}, {S['pOP']}, 0x20000"); lin(S['pF1'],F1P,[("s6",11)])
E(f"s_lshr_b32 {sC0}, s7, 3"); E(f"s_and_b32 {sC1}, s7, 7"); lin(S['pF2'],F2P,[(sC1,16),(sC0,11)])
lin(S['pQST'],QST,[("s2",7)]); lin(S['pF1ST'],F1ST,[("s6",7)])
E(f"s_lshl_b32 {sT}, {sW}, 6"); E(f"v_lshl_add_u32 v249, v{vG}, 4, {sT}")
E(f"v_lshl_add_u32 v{vAQ}, v{vN}, 16, v249")
E(f"s_lshl_b32 {sT}, {sW}, 9"); E(f"v_lshl_add_u32 v{vAL}, v{vG}, 7, {sT}"); E(f"v_lshl_add_u32 v{vAL}, v{vN}, 4, v{vAL}")
E(f"s_mul_i32 {sT}, s6, 1792"); E(f"s_sub_u32 {sT}, {F1CS-F1P:#x}, {sT}")
setexec(0x01000100,0x01000100); E(f"v_add_u32 v{vAL}, {sT}, v249"); fullexec()
if STAMP:
    for i in range(20): E(f"s_mov_b32 s{STS+i}, 0")
stamp(0)
if EXP:
    E("s_cmp_ge_u32 s3, 4"); E("s_cbranch_scc1 L_fin")
    E("s_waitcnt vmcnt(0)"); stamp(1)
    for i,f in enumerate([ld_k,ld_v,ld_wo,ld_w1,ld_w2,ld_wq,ld_k]):
        f(); E("s_waitcnt vmcnt(0)"); stamp(2+i)
    E("s_branch L_fin")
    for nm in ('k','v','wo','w1','w2'): q.extend([nm]*8)
vEP=248
E("s_cmp_ge_u32 s3, 4"); E("s_cbranch_scc1 L_comm")
def flag_store(word):
    lin(sT,FLG+word*4,[("s2",7)])
    setexec(1,0); E(f"buffer_store_dword v{vEP}, off, {WS}, {sT} sc1"); fullexec()
M8=(0x00FF00FF,0x00FF00FF); M9=(0x01FF01FF,0x01FF01FF)
def bump(keys):
    for k in keys: E(f"s_add_u32 {S[k]}, {S[k]}, {LS:#x}")
def l0only(tag):
    E(f"s_cmp_lg_u32 {sLAY}, 0"); E(f"s_cbranch_scc1 L_skip_{tag}")
def bounce(nm,R,natural,nxt=None):
    t=RD+8
    E(f"s_mul_i32 {sT}, {sW}, {BSZ}"); E(f"s_add_u32 {sT}, {sT}, {BOUNCE}")
    E(f"v_add_u32 v{t}, {sT}, v{vL16}")
    E(f"v_lshrrev_b32 v{t+1}, 2, v{vN}"); E(f"v_lshl_add_u32 v{t+1}, v{vG}, {3 if natural else 2}, v{t+1}")
    E(f"v_lshlrev_b32 v{t+1}, 6, v{t+1}"); E(f"v_and_b32 v{t+2}, 3, v{vLANE}"); E(f"v_lshl_add_u32 v{t+1}, v{t+2}, 4, v{t+1}")
    E(f"v_add_u32 v{t+1}, {sT}, v{t+1}")
    wait_for(nm)
    if nm=='v' and YB: E("s_barrier")
    if nxt: iss(nxt)
    for i in range(8): E(f"ds_write_b128 v{t}, {vr(R+4*i,4)} offset:{i*1024}")
    E("s_waitcnt lgkmcnt(0)")
    for tt in range(2):
        for k in range(4):
            for u in range(2):
                E(f"ds_read_b64_tr_b16 {vr(R+16*tt+4*k+2*u,2)}, v{t+1} offset:{k*2048+u*(256 if natural else 1024)+8*tt}")
    E("s_waitcnt lgkmcnt(0)")
def bounce_k():
    t=RD+8
    E(f"s_mul_i32 {sT}, {sW}, {BSZ}"); E(f"s_add_u32 {sT}, {sT}, {BOUNCE}")
    E(f"v_mul_u32_u24 v{t}, 272, v{vG}"); E(f"v_lshl_add_u32 v{t}, v{vN}, 4, v{t}"); E(f"v_add_u32 v{t}, {sT}, v{t}")
    E(f"v_mul_u32_u24 v{t+1}, 272, v{vN}"); E(f"v_lshl_add_u32 v{t+1}, v{vG}, 4, v{t+1}"); E(f"v_add_u32 v{t+1}, {sT}, v{t+1}")
    wait_for('k')
    if SC in (0,7,8): iss(ld_v)
    for i in range(8): E(f"ds_write_b128 v{t}, {vr(RK+4*i,4)} offset:{i*1088}")
    E("s_waitcnt lgkmcnt(0)")
    for tt in range(2):
        for k in range(4): E(f"ds_read_b128 {vr(RK+16*tt+4*k,4)}, v{t+1} offset:{tt*16*272+k*64}")
    E("s_waitcnt lgkmcnt(0)")
def read_b(base):
    for k in range(4): E(f"ds_read_b128 {vr(RB+4*k,4)}, v{vL16} offset:{base+k*1024}")
def mm(R):
    for k in range(4):
        E(f"s_waitcnt lgkmcnt({3-k})" if not STAMP else "s_waitcnt lgkmcnt(0)")
        for tt in range(2): mfma(RD+4*tt,R+16*tt+4*k,RB+4*k,None if k==0 else RD+4*tt)
def pack_store(src,va,so,mask):
    for i in range(4): E(f"v_cvt_pk_bf16_f32 v{RD+8+i}, v{src+2*i}, v{src+2*i+1}")
    if mask is M9: E(f"s_mov_b32 exec_lo, {sC0}"); E(f"s_mov_b32 exec_hi, {sC0}")
    else: setexec(*mask)
    E(f"buffer_store_dwordx4 {vr(RD+8,4)}, v{va}, {WS}, {so} offen sc1"); fullexec(); q.append('st')
def gemm_phase(R,p,va,so,mask):
    read_b(OPB[p]); mm(R); nop(8); pack_store(RD,va,so,mask)
E(f"s_mov_b32 {sC0}, 0x01FF01FF"); E("s_waitcnt lgkmcnt(0)")
if SC==5: E("s_barrier"); iss(ld_k)
L("L_wloop")
l0only("wq"); bounce('wq',RWQ,False,ld_v if SC in (1,2,5) else ld_k); L("L_skip_wq")
E("s_barrier")
stamp(1)
gemm_phase(RWQ,0,vAQ,S['pQP'],M9)
stamp(2)
ack("q")
l0only("k"); bounce_k(); bounce('v',RV,False,ld_wo if SC!=1 else None); L("L_skip_k")
E("s_barrier")
stamp(3)
def at_bar(tag,f):
    l0only(tag); iss(f); L("L_skip_"+tag)
def l1clear():
    for i in range(4): E(f"v_mov_b32 v{240+i}, -1")
    E(f"s_lshl_b32 {sT}, s6, 2"); E(f"s_add_u32 {sT}, {sT}, {sW}"); E(f"s_mul_i32 {sT}, {sT}, 3072"); E(f"s_add_u32 {sT}, {sT}, {LS:#x}")
    E(f"v_mov_b32 v244, v{vL16}"); inact(sA1,244)
    for i in range(3): E(f"buffer_store_dwordx4 v[240:243], v244, {WS}, {sT} offen offset:{i*1024} sc1"); q.append('c1')
read_b(OPB[1])
if SC==1: at_bar("iwo",ld_wo)
if SC in (2,5,7,8): at_bar("iw1",ld_w1)
mm(RK);
E(f"s_mov_b32 {sT}, 0x3e0293ee")
nop(7)
d=RD; t=RD+8
E(f"v_max3_f32 v{t}, v{d}, v{d+1}, v{d+2}"); E(f"v_max3_f32 v{t+1}, v{d+3}, v{d+4}, v{d+5}")
E(f"v_max3_f32 v{t}, v{t}, v{d+6}, v{d+7}"); E(f"v_max_f32 v{t}, v{t}, v{t+1}")
def xrow(op,a,b):
    for sw in ("16","32"):
        E(f"v_mov_b32 v{b}, v{a}"); nop(2); E(f"v_permlane{sw}_swap_b32 v{a}, v{b}"); E(f"{op} v{a}, v{a}, v{b}")
xrow("v_max_f32",t,t+1)
E(f"v_mul_f32 v{t}, {sT}, v{t}")
for i in range(8): E(f"v_fma_f32 v{d+i}, v{d+i}, {sT}, -v{t}")
for i in range(8): E(f"v_exp_f32 v{d+i}, v{d+i}")
nop(1)
for i in range(4): E(f"v_cvt_pk_bf16_f32 v{t+4+i}, v{d+2*i}, v{d+2*i+1}")
E(f"s_lshl_b32 {sT}, {sW}, 10"); E(f"v_add_u32 v{t+2}, {sT}, v{vL16}")
E(f"ds_write_b128 v{t+2}, {vr(t+4,4)} offset:{PB}")
E(f"v_add_f32 v{d}, v{d}, v{d+1}"); E(f"v_add_f32 v{d+2}, v{d+2}, v{d+3}"); E(f"v_add_f32 v{d+4}, v{d+4}, v{d+5}"); E(f"v_add_f32 v{d+6}, v{d+6}, v{d+7}")
E(f"v_add_f32 v{d}, v{d}, v{d+2}"); E(f"v_add_f32 v{d+4}, v{d+4}, v{d+6}"); E(f"v_add_f32 v{t+1}, v{d}, v{d+4}")
xrow("v_add_f32",t+1,t+3)
E(f"s_lshl_b32 {sT}, {sW}, 3"); E(f"v_lshl_add_u32 v{t+2}, v{vN}, 5, {sT}")
setexec(0xFFFF,0); E(f"ds_write_b64 v{t+2}, {vr(t,2)} offset:{SMB}"); fullexec()
E("s_waitcnt lgkmcnt(0)")
E("s_barrier")
E(f"v_lshlrev_b32 v249, 5, v{vN}")
read_b(PB)
E(f"ds_read_b128 v[240:243], v249 offset:{SMB}"); E(f"ds_read_b128 v[244:247], v249 offset:{SMB+16}")
for k in range(4):
    E(f"s_waitcnt lgkmcnt({5-k})" if not STAMP else "s_waitcnt lgkmcnt(0)")
    for tt in range(2): mfma(RD+8*k+4*tt,RV+16*tt+4*k,RB+4*k,None)
E("s_waitcnt lgkmcnt(0)")
E("v_max3_f32 v248, v240, v242, v244"); E("v_max_f32 v248, v248, v246")
for i in range(4): E(f"v_sub_f32 v{240+2*i}, v{240+2*i}, v248")
for i in range(4): E(f"v_exp_f32 v{240+2*i}, v{240+2*i}")
nop(1)
E("v_mul_f32 v249, v240, v241")
for i in range(1,4): E(f"v_fmac_f32 v249, v{240+2*i}, v{241+2*i}")
for i in range(8): E(f"v_mul_f32 v{RD+i}, v240, v{RD+i}")
for k in range(1,4):
    for i in range(8): E(f"v_fmac_f32 v{RD+i}, v{240+2*k}, v{RD+8*k+i}")
pack_store(RD,vAQ,S['pAP'],M8)
E(f"v_lshlrev_b32 v240, 11, v{vN}")
E(f"s_lshl_b32 {sT}, {sW}, 1"); E(f"s_lshl_b32 exec_lo, 3, {sT}"); E("s_mov_b32 exec_hi, 0")
E(f"buffer_store_dwordx2 v[248:249], v240, {WS}, {S['pAST']} offen sc1"); fullexec(); q.append('st')
stamp(4)
ack("a")
l0only("wo")
JIT=int(opts.get('jit',0)); BOTH=int(opts.get('both',0))
if BOTH:
    if BOTH==2: l1clear()
    iss(ld_w1); iss(ld_w2)
    if BOTH==1: l1clear()
    bounce('wo',RWO,True); bounce('w1',RW1,False)
elif JIT: bounce('wo',RWO,True,ld_w1)
elif SC==0: bounce('wo',RWO,True,ld_w1); bounce('w1',RW1,False,None if 'w2d' in opts else ld_w2)
elif SC in (7,8): bounce('wo',RWO,True); bounce('w1',RW1,False,ld_w2 if SC==7 else None)
else:
    if SC==5: iss(ld_w2)
    l1clear(); bounce('wo',RWO,True)
if SC in (2,5): bounce('w1',RW1,False)
L("L_skip_wo")
E("s_barrier")
stamp(5)
if SC==1: at_bar("iw1",ld_w1)
if SC in (2,8) or opts.get('w2d')=='1': at_bar("iw2",ld_w2)
gemm_phase(RWO,2,vAL,S['pOP'],M8)
ack("o")
l0only("w1")
if opts.get('w2d')=='2': iss(ld_w2)
if SC in (0,7,8) and BOTH in (0,3): l1clear()
if JIT: bounce('w1',RW1,False,ld_w2); wait_for('c1')
elif SC==1: bounce('w1',RW1,False)
else: bounce('w2',RW2,False); E("s_waitcnt vmcnt(0)"); stamp2(18)
L("L_skip_w1")
E("s_barrier")
stamp(6)
if SC==1: at_bar("iw2",ld_w2)
E(f"s_cmp_eq_u32 {sA1}, 0"); E("s_cbranch_scc1 L_nof1")
gemm_phase(RW1,3,vAL,S['pF1'],M9); q.pop()
L("L_nof1")
if SC==1 or JIT: ack("f"); l0only("w2"); bounce('w2',RW2,False); L("L_skip_w2")
else: ack()
E("s_barrier")
stamp(7)
E(f"s_cmp_eq_u32 {sA2}, 0"); E("s_cbranch_scc1 L_nof2")
gemm_phase(RW2,4,vAL,S['pF2'],M8)
L("L_nof2")
stamp(8)
ack()
bump(['pQP','pAP','pAST','pOP','pF1','pF2']); E(f"s_mov_b32 {sC0}, 0x00FF00FF")
E(f"s_add_u32 {sLAY}, {sLAY}, 1"); E(f"s_cmp_lt_u32 {sLAY}, 2"); E("s_cbranch_scc1 L_wloop")
E("s_branch L_fin")
L("L_comm")
G=0; X=64; MP=72; A1=80; AG=88; D0=92; D1=96; D2=100; D3=104; T=108; AW=160
vG1,vCS,vST,vG3,vAST,vLW,vSTa,vOW,vONE=140,141,142,143,144,145,146,147,148
E(f"v_and_b32 v{T}, 7, v{vN}"); E(f"v_lshrrev_b32 v{T+1}, 3, v{vN}")
E(f"v_lshlrev_b32 v{vOW}, 11, v{T}"); E(f"v_lshl_add_u32 v{vOW}, v{vG}, 3, v{vOW}")
lin(sT,0,[(sLO,8),(sW,6)]); E(f"v_add_u32 v{vOW}, {sT}, v{vOW}")
E(f"buffer_load_dwordx2 v[{T+8}:{T+9}], v{vOW}, {SX}, 0 offen"); E(f"buffer_load_dwordx2 v[{T+10}:{T+11}], v{vOW}, {SX}, 0 offen offset:32")
for i in range(4): E(f"v_mov_b32 v{G+i}, -1")
E(f"s_cmp_lg_u32 {sW}, 1"); E("s_cbranch_scc1 L_cl2")
E(f"v_lshlrev_b32 v{T+2}, 4, v{vN}"); E(f"v_lshl_add_u32 v{T+3}, v{vG}, 16, v{T+2}")
E(f"buffer_store_dwordx4 {vr(G,4)}, v{T+3}, {WS}, {S['pQP']} offen sc1")
E(f"s_add_u32 {sT}, {S['pQP']}, 0x40000"); E(f"buffer_store_dwordx4 {vr(G,4)}, v{T+3}, {WS}, {sT} offen sc1")
E(f"s_add_u32 {sT}, {S['pQP']}, 0x80000"); E(f"v_add_u32 v{T+3}, {sT}, v{T+2}")
setexec(0xFF0000,0); E(f"v_add_u32 v{T+3}, {S['pQST']}, v{T+2}")
lin(sT,AST,[(sLO,11),("s4",9),("s5",6)]); setexec(0,0xF); E(f"v_add_u32 v{T+3}, {sT}, v{T+2}")
setexec(0xFFFFFF,0xF); E(f"buffer_store_dwordx4 {vr(G,4)}, v{T+3}, {WS}, 0 offen sc1"); fullexec()
L("L_cl2")
lin(sT,AP,[(sLO,16),("s4",14),("s5",11)])
E(f"s_cmp_eq_u32 {sW}, 0"); E(f"s_cselect_b32 {sT}, {S['pOP']}, {sT}")
E(f"s_cmp_eq_u32 {sW}, 2"); E(f"s_cselect_b32 {sT}, {S['pF1']}, {sT}")
E(f"s_cmp_eq_u32 {sW}, 3"); E(f"s_cselect_b32 {sT}, {S['pF2']}, {sT}")
for i in range(2): E(f"buffer_store_dwordx4 {vr(G,4)}, v{vL16}, {WS}, {sT} offen offset:{i*1024} sc1")
E(f"s_bitcmp1_b32 {sW}, 0"); E("s_cbranch_scc1 L_nsm")
lin(sT,F1CS,[("s6",8)])
E(f"s_cmp_eq_u32 {sW}, 0"); E(f"s_cselect_b32 {sT}, {S['pF1ST']}, {sT}"); E(f"s_cselect_b32 exec_lo, 0xff, -1"); E("s_and_b32 exec_lo, exec_lo, 0xffff"); E("s_mov_b32 exec_hi, 0")
E(f"buffer_store_dwordx4 {vr(G,4)}, v{vL16}, {WS}, {sT} offen sc1")
L("L_nsm"); fullexec()
if SC==5: E("s_barrier")
E(f"v_lshlrev_b32 v{vSTa}, 3, v{T}"); setexec(0xFFFFFFFF,0); E(f"v_add_u32 v{vSTa}, 4, v{vSTa}")
fullexec()
lin(S['gF2'],(F2P-LS)&0xffffffff,[(sLO,16)]); lin(S['gOP'],OP,[(sLO,16)]); lin(S['gQP'],QP,[(sLO,16),("s4",14)]); lin(S['gQCS'],QP+8*65536,[("s4",14)])
lin(S['gQST'],QST,[(sHI,10),(sLO,3)]); lin(S['gAP'],AP,[(sLO,16),("s4",14)]); lin(S['gAST'],AST,[(sLO,11),("s4",9)])
E(f"s_lshr_b32 {sC0}, s7, 3")
lin(S['gF1'],F1P,[(sC0,14)]); lin(S['gF1CS'],F1CS,[(sC0,11)]); lin(S['gF1ST'],F1ST,[(sC0,10)])
E(f"v_and_b32 v{T+3}, 2, v{vG}"); E(f"v_add_u32 v{T+3}, v{T+3}, v{T+1}")
E(f"v_and_b32 v{T+4}, 1, v{vG}")
E(f"s_lshl_b32 {sT}, {sW}, 9"); E(f"v_lshl_add_u32 v{vG1}, v{T+3}, 11, {sT}"); E(f"v_lshl_add_u32 v{vG1}, v{T+4}, 7, v{vG1}"); E(f"v_lshl_add_u32 v{vG1}, v{T}, 4, v{vG1}")
E(f"s_lshl_b32 {sT}, {sW}, 6"); E(f"v_lshl_add_u32 v{vCS}, v{T+3}, 8, {sT}"); E(f"v_lshl_add_u32 v{vCS}, v{T+4}, 4, v{vCS}")
E(f"v_lshl_add_u32 v{vST}, v{vG}, 1, v{T+1}"); E(f"v_lshlrev_b32 v{vST}, 7, v{vST}")
E(f"v_lshl_add_u32 v149, v{T}, 3, v{vST}")
E(f"s_lshl_b32 {sT}, {sW}, 12"); E(f"v_lshl_add_u32 v{vG3}, v{vG}, 9, {sT}"); E(f"v_lshl_add_u32 v{vG3}, v{vN}, 4, v{vG3}")
E(f"s_lshl_b32 {sT}, {sW}, 7"); E(f"v_lshl_add_u32 v{vAST}, v{T+1}, 6, {sT}"); E(f"v_lshl_add_u32 v{vAST}, v{vG}, 4, v{vAST}")
E(f"s_lshl_b32 {sT}, {sW}, 5"); E(f"v_lshl_add_u32 v{vLW}, v{vG}, 3, {sT}"); E(f"v_lshl_add_u32 v{vLW}, v{vN}, 8, v{vLW}")
E(f"s_lshl_b32 {sT}, {sW}, 10"); E(f"v_add_u32 v150, {sT}, v{vL16}")
E(f"v_mov_b32 v{vONE}, 1.0"); lin(sC0,4,[(sW,13)]); E(f"v_lshl_add_u32 v188, v{vLANE}, 7, {sC0}")
E(f"v_and_b32 v{T+5}, 1, v{vN}"); E(f"v_lshlrev_b32 v{T+5}, 4, v{T+5}"); E(f"v_mov_b32 v{T+6}, 0xffff"); E(f"v_lshlrev_b32 v{T+6}, v{T+5}, v{T+6}")
E(f"v_lshrrev_b32 v{T+5}, 1, v{vN}")
for i in range(8):
    E(f"v_cmp_eq_u32 vcc, {i}, v{T+5}"); nop(2); E(f"v_cndmask_b32 v{MP+i}, 0, v{T+6}, vcc")
for i in range(8): E(f"v_and_b32 v{A1+i}, 0x3f803f80, v{MP+i}")
E(f"v_cmp_eq_u32 vcc, 0, v{T+4}"); nop(2)
for i in range(4): E(f"v_cndmask_b32 v{AG+i}, v{A1+4+i}, v{A1+i}, vcc")
E("s_waitcnt vmcnt(5)"); E(f"s_cmp_eq_u32 {sW}, 1"); E("s_cbranch_scc1 L_x0p")
E("s_waitcnt vmcnt(3)"); E(f"s_cmp_lg_u32 {sW}, 3"); E("s_cbranch_scc1 L_x0p")
E("s_waitcnt vmcnt(2)"); L("L_x0p"); E("s_waitcnt lgkmcnt(0)"); E("s_add_u32 s0, s0, 1"); E(f"v_mov_b32 v{vEP}, s0")
E("s_branch L_x0")
uid=[0]
def gld(dst,va,so,off,sel):
    if sel:
        uid[0]+=1
        E(f"v_max3_u32 v190, v{dst}, v{dst+1}, v{dst+2}"); E(f"v_max_u32 v190, v190, v{dst+3}"); E("v_cmp_eq_u32 vcc, -1, v190")
        E("s_mov_b64 exec, vcc"); E(f"s_cbranch_execz L_sl{uid[0]}")
    E(f"buffer_load_dwordx4 {vr(dst,4)}, v{va}, {WS}, {so} offen offset:{off} sc1")
    if sel: L(f"L_sl{uid[0]}"); fullexec()
def poll_end(tag,regs,loads):
    E(f"v_cmp_u_f32 {sP}, v{regs[0]}, v{regs[1]}")
    if len(regs)>2:
        E(f"v_cmp_u_f32 vcc, v{regs[2]}, v{regs[3]}"); E(f"s_or_b64 {sP}, {sP}, vcc")
    E(f"s_cmp_eq_u64 {sP}, 0"); E(f"s_cbranch_scc1 L_pd_{tag}")
    E(f"s_sub_u32 {sBUD}, {sBUD}, 1"); E(f"s_cmp_lt_i32 {sBUD}, 0"); E(f"s_cbranch_scc1 L_pd_{tag}")
    if int(opts.get('slp',0)): E(f"s_sleep {opts['slp']}")
    loads(True); E("s_waitcnt vmcnt(0)"); E(f"s_branch L_pm_{tag}")
    L(f"L_pd_{tag}")
def ror8(r,n):
    for i in range(n): E(f"v_add_f32_dpp v{r+i}, v{r+i}, v{r+i} row_ror:8 row_mask:0xf bank_mask:0xf")
def g1(tag,key,ng):
    def loads(sel):
        E(f"s_mov_b32 {sT}, {S[key]}")
        for i in range(ng):
            for h in range(2): gld(G+8*i+4*h,vG1,sT,h*256,sel)
            if i<ng-1: E(f"s_add_u32 {sT}, {sT}, 8192")
    loads(False); L(f"L_pm_{tag}")
    for i in range(ng):
        for h in range(2):
            E(f"s_waitcnt vmcnt({2*ng-1-2*i-h})"); mfma(D0+4*h,AG,G+8*i+4*h,None if i==0 else D0+4*h)
    nop(8); poll_end(tag,[D0,D1],loads); ror8(D0,8)
    for i in range(8): E(f"v_add_f32 v{D0+i}, v{D0+i}, v{X+i}")
    for i in range(4): E(f"v_cvt_pk_bf16_f32 v{T+8+i}, v{D0+2*i}, v{D0+2*i+1}")
def x_out(p):
    for i in range(4):
        E(f"v_lshlrev_b32 v{X+2*i}, 16, v{T+8+i}"); E(f"v_and_b32 v{X+2*i+1}, 0xffff0000, v{T+8+i}")
    setexec(0xFF00FF00,0xFF00FF00)
    for i in range(4): E(f"v_mov_b32 v{T+8+i}, 0x3f803f80")
    fullexec()
    E(f"ds_write_b128 v150, {vr(T+8,4)} offset:{OPB[p]}"); E("s_waitcnt lgkmcnt(0)")
def gram(tag,p,key):
    for k in range(4): E(f"ds_read_b128 {vr(G+4*k,4)}, v{vL16} offset:{OPB[p]+k*1024}")
    E("s_waitcnt lgkmcnt(0)")
    for k in range(4): mfma(D0,G+4*k,G+4*k,None if k==0 else D0)
    nop(8)
    for i in range(1,4):
        setexec((1<<i)|(1<<(20+i)),0); E(f"v_mov_b32 v{D0}, v{D0+i}")
    setexec(0x00F0000F,0xFF); E(f"buffer_store_dword v{D0}, v{vSTa}, {WS}, {S[key]} offen sc1"); fullexec()
def ln_stats(r):
    ror8(D2,1); ror8(D3,1)
    E(f"s_mov_b32 {sT}, 0x3a800000")
    E(f"v_mul_f32 v{D2}, {sT}, v{D2}"); E(f"v_mul_f32 v{D3}, {sT}, v{D3}")
    E(f"v_fma_f32 v{D3}, -v{D2}, v{D2}, v{D3}"); E(f"v_max_f32 v{D3}, 0, v{D3}"); E(f"v_add_f32 v{D3}, 0x3727c5ac, v{D3}")
    E(f"v_rsq_f32 v{D3}, v{D3}")
def stat_mfma(r):
    E(f"v_mfma_f32_16x16x4_f32 {vr(D2,4)}, v{vONE}, v{r}, 0"); E(f"v_mfma_f32_16x16x4_f32 {vr(D3,4)}, v{vONE}, v{r+1}, 0")
L("L_cloop")
E(f"s_cmp_lt_u32 {sLAY}, 2"); E("s_cbranch_scc1 L_nf"); E(f"s_cmp_lg_u32 {sHI}, {sW}"); E("s_cbranch_scc1 L_fin"); L("L_nf")
g1("f2",'gF2',7)
E(f"s_cmp_lt_u32 {sLAY}, 2"); E("s_cbranch_scc1 L_x0")
setexec(*M8)
E(f"buffer_store_dwordx2 v[{T+8}:{T+9}], v{vOW}, {SOUT}, 0 offen"); E(f"buffer_store_dwordx2 v[{T+10}:{T+11}], v{vOW}, {SOUT}, 0 offen offset:32")
fullexec(); E("s_branch L_fin")
L("L_x0")
x_out(0)
stamp(1)
l0only("fs"); E(f"s_cmp_lg_u32 {sW}, 1"); E("s_cbranch_scc1 L_skip_fs")
E("s_waitcnt vmcnt(0)"); flag_store(0); stamp2(11); L("L_skip_fs")
E("s_barrier")
E(f"s_cmp_lg_u32 {sW}, 0"); E("s_cbranch_scc1 L_ng0"); gram("q",0,'pQST'); L("L_ng0")
stamp(7)
def flagpoll(tag,lo,hi,T=T,pre=False):
    E(f"s_mov_b32 {sT}, {FLG:#x}"); setexec(lo,hi)
    if pre: E(f"s_branch L_fc{tag}")
    L(f"L_fl{tag}")
    E(f"buffer_load_dword v{T+1}, v{T}, {WS}, {sT} offen sc1"); L(f"L_fc{tag}"); E("s_waitcnt vmcnt(0)")
    E(f"v_cmp_ne_u32 {sP}, v{vEP}, v{T+1}"); E(f"s_cmp_eq_u64 {sP}, 0"); E(f"s_cbranch_scc1 L_fd{tag}")
    E(f"s_sleep {opts.get('fs','2')}")
    E(f"s_sub_u32 {sBUD}, {sBUD}, 1"); E(f"s_cmp_gt_i32 {sBUD}, 0"); E(f"s_cbranch_scc1 L_fl{tag}")
    L(f"L_fd{tag}"); fullexec()
E("s_barrier")
l0only("flag")
lin(sC0,0,[("s4",13),(sW,11)]); E(f"v_lshl_add_u32 v{T}, v{vN}, 7, {sC0}")
E(f"s_lshl_b32 {sC0}, {sHI}, 10"); setexec(0xFF0000,0); E(f"v_lshl_add_u32 v{T}, v{vN}, 7, {sC0}"); fullexec()
flagpoll("g",0xFFFFFF,0)
L("L_skip_flag")
def l0delay(tag):
    if int(opts.get('l0d',0)): l0only("dl"+tag); E(f"s_sleep {opts['l0d']}"); L("L_skip_dl"+tag)
stamp(2)
CQ=176; CF=180
def ld_q(sel):
    l0only(f"cq0{sel}")
    for p in range(2):
        for i in range(2): gld(G+16+8*p+4*i,vG3,S['gQCS'],p*2048+i*256,sel)
    L(f"L_skip_cq0{sel}")
    E(f"buffer_load_dwordx2 v[{T}:{T+1}], v{vST}, {WS}, {S['gQST']} offen sc1")
    for p in range(2):
        for i in range(2): gld(G+8*p+4*i,vG3,S['gQP'],p*2048+i*256,sel)
ld_q(False)
if YB: l0only("y"); E("s_barrier"); L("L_skip_y")
L("L_pm_q")
E("s_waitcnt vmcnt(4)"); stat_mfma(T)
l0only("cq")
for c in range(4): mfma(CQ,A1+4*(c//2),G+16+4*c,None if c==0 else CQ)
L("L_skip_cq")
nop(8); ln_stats(T)
E(f"v_add_f32 v{T+2}, v{D3+1}, v{D2+1}")
for i in range(4): E(f"v_mul_f32 v{D0+i}, -v{D2}, v{CQ+i}")
nop(1)
for c in range(4):
    E(f"s_waitcnt vmcnt({3-c})"); mfma(D0,A1+4*(c//2),G+4*c,D0)
nop(8)
for i in range(4): E(f"v_mul_f32 v{D0+i}, v{D3}, v{D0+i}")
poll_end("q",[D0,T+2],ld_q)
def small_out(p):
    for i in range(2): E(f"v_cvt_pk_bf16_f32 v{T+8+i}, v{D0+2*i}, v{D0+2*i+1}")
    E(f"ds_write_b64 v{vLW}, {vr(T+8,2)} offset:{OPB[p]}"); E("s_waitcnt lgkmcnt(0)")
small_out(1)
stamp(3)
E("s_barrier")
l0only("c1")
E(f"s_cmp_lg_u32 {sW}, 1"); E("s_cbranch_scc1 L_skip_c1"); flag_store(1)
L("L_skip_c1")
E("s_barrier")
E("s_barrier")
l0delay("a")
stamp(8)
def ld_a(sel):
    E(f"buffer_load_dwordx4 {vr(T,4)}, v{vAST}, {WS}, {S['gAST']} offen sc1")
    for p in range(2):
        for i in range(2): gld(G+8*p+4*i,vG3,S['gAP'],p*2048+i*256,sel)
ld_a(False); L("L_pm_a")
E("s_waitcnt vmcnt(4)")
E(f"v_max_f32 v{T+4}, v{T}, v{T+2}"); xrow("v_max_f32",T+4,T+5)
E(f"v_sub_f32 v{T}, v{T}, v{T+4}"); E(f"v_sub_f32 v{T+2}, v{T+2}, v{T+4}"); E(f"v_exp_f32 v{T}, v{T}"); E(f"v_exp_f32 v{T+2}, v{T+2}"); nop(1)
E(f"v_cvt_pk_bf16_f32 v{T}, v{T}, v{T}"); E(f"v_cvt_pk_bf16_f32 v{T+2}, v{T+2}, v{T+2}")
for p in range(2):
    for i in range(2):
        for r in range(4): E(f"v_and_b32 v{AW+8*p+4*i+r}, v{MP+4*p+r}, v{T+2*i}")
E(f"v_and_b32 v{T}, 0xffff0000, v{T}"); E(f"v_and_b32 v{T+2}, 0xffff0000, v{T+2}")
for c in range(4):
    E(f"s_waitcnt vmcnt({3-c})"); mfma(D0,AW+4*c,G+4*c,None if c==0 else D0)
E(f"v_mul_f32 v{T+4}, v{T}, v{T+1}"); E(f"v_fmac_f32 v{T+4}, v{T+2}, v{T+3}"); xrow("v_add_f32",T+4,T+5)
E(f"v_rcp_f32 v{T+4}, v{T+4}"); nop(1)
E(f"v_readlane_b32 {sC0}, v{T+4}, 0"); E(f"v_readlane_b32 {sC1}, v{T+4}, 8"); nop(2)
E(f"v_mov_b32 v{T+4}, {sC1}"); setexec(0xFFFFFFFF,0); E(f"v_mov_b32 v{T+4}, {sC0}"); fullexec()
for i in range(4): E(f"v_mul_f32 v{D0+i}, v{T+4}, v{D0+i}")
poll_end("a",[D0,D0+1],ld_a)
l0only("c3")
E(f"s_mov_b32 {sT}, {FLG:#x}"); E(f"buffer_load_dword v189, v188, {WS}, {sT} offen sc1")
L("L_skip_c3")
small_out(2)
stamp(4)
E("s_barrier")
l0only("c2"); flagpoll("a",0xFFFFFFFF,0xFFFFFFFF,188,True); L("L_skip_c2")
E("s_barrier")
E(f"s_add_u32 {sT}, s2, {sW}"); E(f"s_add_u32 {sT}, {sT}, {sLAY}"); E(f"s_cmp_lg_u32 {sT}, 0"); E("s_cbranch_scc1 L_nep")
E(f"s_mov_b32 {sT}, {EPO:#x}"); setexec(1,0); E(f"buffer_store_dword v{vEP}, off, {WS}, {sT} sc1"); fullexec()
L("L_nep")
l0delay("o")
g1("o",'gOP',8)
x_out(3)
stamp(5)
E("s_barrier")
E(f"s_cmp_lg_u32 {sW}, 0"); E("s_cbranch_scc1 L_ng1"); E(f"s_cmp_eq_u32 {sA1}, 0"); E("s_cbranch_scc1 L_ng1"); gram("f",3,'pF1ST'); L("L_ng1")
E("s_barrier")
if SC==1 or JIT: l0delay("f")
E(f"s_cmp_eq_u32 {sA2}, 0"); E("s_cbranch_scc1 L_nog2")
E0,E1=AW,AW+4
def ld_h(sel):
    l0only(f"cf0{sel}")
    for i in range(2):
        for h in range(2): gld(G+16+8*i+4*h,vCS,S['gF1CS'],i*1024+h*32,sel)
    L(f"L_skip_cf0{sel}")
    E(f"buffer_load_dwordx2 v[{T}:{T+1}], v149, {WS}, {S['gF1ST']} offen sc1")
    E(f"s_add_u32 {sT}, {S['gF1']}, 8192")
    for i in range(2):
        for h in range(2): gld(G+8*i+4*h,vG1,S['gF1'] if i==0 else sT,h*256,sel)
ld_h(False); L("L_pm_h")
E("s_waitcnt vmcnt(4)"); stat_mfma(T)
l0only("cf")
for c in range(4): mfma(CF+4*(c%2),AG,G+16+4*c,None if c<2 else CF+4*(c%2))
L("L_skip_cf")
nop(8); ln_stats(T)
E(f"v_add_f32 v{T+2}, v{D3+1}, v{D2+1}")
for i in range(8): E(f"v_mul_f32 v{D0+i}, -v{D2}, v{CF+i}")
nop(1)
for c in range(4):
    E(f"s_waitcnt vmcnt({3-c})"); mfma(D0+4*(c%2),AG,G+4*c,D0+4*(c%2))
nop(8)
poll_end("h",[D0,D1,T+2,T+2],ld_h)
ror8(D0,8)
E(f"s_mov_b32 {sT}, 0xbfb8aa3b")
for i in range(8): E(f"v_mul_f32 v{D0+i}, v{D3}, v{D0+i}")
for i in range(8): E(f"v_mul_f32 v{E0+i}, {sT}, v{D0+i}")
for i in range(8): E(f"v_exp_f32 v{E0+i}, v{E0+i}")
for i in range(8): E(f"v_add_f32 v{E0+i}, 1.0, v{E0+i}")
for i in range(8): E(f"v_rcp_f32 v{E0+i}, v{E0+i}")
for i in range(8): E(f"v_mul_f32 v{D0+i}, v{E0+i}, v{D0+i}")
for i in range(4): E(f"v_cvt_pk_bf16_f32 v{T+8+i}, v{D0+2*i}, v{D0+2*i+1}")
E(f"ds_write_b128 v150, {vr(T+8,4)} offset:{OPB[4]}"); E("s_waitcnt lgkmcnt(0)")
L("L_nog2")
stamp(6)
E("s_barrier")
E("s_barrier")
bump(['pQST','pF1ST','gF2','gOP','gQP','gQCS','gQST','gAP','gAST','gF1','gF1CS','gF1ST'])
E(f"s_add_u32 {sLAY}, {sLAY}, 1"); E("s_branch L_cloop")
L("L_fin")
if STAMP:
    E(f"s_mov_b32 {sLAY}, 1"); stamp(9)
    E(f"s_mov_b32 s{STS+9}, {sBUD}")
    E("s_lshl_b32 s4, s2, 3"); E("s_add_u32 s4, s4, s3"); E("s_lshl_b32 s4, s4, 7"); E(f"s_add_u32 s4, s4, {STB_WS:#x}")
    E("v_mov_b32 v1, 0"); setexec(1,0)
    for i in range(20):
        E(f"v_mov_b32 v2, s{STS+i}"); E(f"buffer_store_dword v2, v1, {WS}, s4 offen offset:{4*i}"); nop(2)
    E("s_waitcnt vmcnt(0)")
L("L_end")
E("s_endpgm")
out.append(""".section .rodata,"a"
.p2align 6
.amdhsa_kernel %s_kernel
  .amdhsa_next_free_vgpr 256
  .amdhsa_next_free_sgpr 102
  .amdhsa_accum_offset 256
  .amdhsa_group_segment_fixed_size 0
  .amdhsa_kernarg_size 88
  .amdhsa_user_sgpr_count 2
  .amdhsa_user_sgpr_kernarg_segment_ptr 1
  .amdhsa_system_sgpr_workgroup_id_x 1
.end_amdhsa_kernel"""%NAME)
open(sys.argv[1],"w").write("\n".join(out)+"\n")
```

```python
import sys
NAME="interleave_layers__sliding_block_cached__dense_activation_silu__decode"
opts=dict(a.split('=') for a in sys.argv[2:])
STAMP=int(opts.get('stamp',0))
STAGE=int(opts.get('stage',0))
NT=opts.get('nt','0')=='1'
out=[]
secs={k:[] for k in ('wt','cm','g1f','rt','fin')}; cur=[out]
def sec(k):
    old=cur[0]; cur[0]=secs[k] if isinstance(k,str) else k; return old
def E(s): cur[0].append("    "+s)
def L(s): cur[0].append(s+":")
def C(s): out.append("    ; "+s)
def nop(n): E(f"s_nop {n-1}")
LS=0x300000
AP,OP,F1P,F2P,QST,F1ST,AST,QP,F1CS=0,0x80000,0x100000,0x180000,0x200000,0x208000,0x210000,0x214000,0x2A4000
FLG,EPO=0x2C0000,0x2D0000
STB_WS=0x600000
WS_REC=0x800000
OPB=[0,4096,8192,12288,16384]; PB=20480; SMB=24576; BOUNCE=25600; BSZ=8704
LDS=61440
WS="s[8:11]"; SWQ="s[12:15]"; SK="s[16:19]"; SV="s[20:23]"; SWO="s[24:27]"; SW1="s[28:31]"; SW2="s[32:35]"
SX="s[36:39]"; SOUT="s[40:43]"; SDBG="s[44:47]"
sW,sLO,sHI,sLAY,sBUD,sT,sT2,sETA="s48","s49","s50","s51","s52","s53","s54","s55"
sA1,sA2="s56","s57"
offs=["pQP","pAP","pAST","pOP","pF1","pF2","pQST","pF1ST","gF2","gOP","gQP","gQCS","gQST","gAP","gAST","gF1","gF1CS","gF1ST"]
S={n:f"s{58+i}" for i,n in enumerate(offs)}
sC0,sC1="s76","s77"; sP="s[78:79]"; sP0,sP1="s78","s79"
STS=80
nst=[0]
def stamp(i):
    if STAMP:
        E("s_memrealtime s[100:101]"); E("s_waitcnt lgkmcnt(0)")
        E(f"s_cmp_eq_u32 {sLAY}, 0"); E(f"s_cselect_b32 s{STS+i}, s100, s{STS+i}");
        if STAMP!=2 or i==9: E(f"s_cselect_b32 s{STS+10+i}, s{STS+10+i}, s100")
def stamp2(i):
    if STAMP==2: E("s_memrealtime s[100:101]"); E("s_waitcnt lgkmcnt(0)"); E(f"s_mov_b32 s{STS+i}, s100")
def setexec(lo,hi):
    E(f"s_mov_b32 exec_lo, {lo:#x}"); E(f"s_mov_b32 exec_hi, {hi:#x}")
def fullexec(): E("s_mov_b64 exec, -1")
def vr(a,n): return f"v[{a}:{a+n-1}]"
def mfma(d,a,b,c): E(f"v_mfma_f32_16x16x32_bf16 {vr(d,4)}, {vr(a,4)}, {vr(b,4)}, {('0' if c is None else vr(c,4))}")
def srd(s,ptr,n):
    b=int(s[2:s.index(':')])
    E(f"s_mov_b32 s{b}, s{ptr}"); E(f"s_and_b32 s{b+1}, s{ptr+1}, 0xffff"); E(f"s_mov_b32 s{b+2}, {n:#x}"); E(f"s_mov_b32 s{b+3}, 0x20000")
vL16,vAQ,vAL,vLANE,vN,vG=255,254,253,252,251,250
hdr=open(f"cdna_kernels/{NAME}.s.ref").read().split("; Override")[0]
out.append(hdr.rstrip())
out.append(f"; @launch grid=(256,1,1) block=(512,1,1) lds={LDS}")
out.append('.amdgcn_target "amdgcn-amd-amdhsa--gfx950"\n.text\n.globl %s_kernel\n.p2align 8\n.type %s_kernel,@function\n%s_kernel:'%(NAME,NAME,NAME))
E("s_cmp_ge_u32 s2, 256"); E("s_cbranch_scc1 L_end")
if opts.get('perm'): E("s_lshr_b32 s3, s2, 3"); E("s_and_b32 s2, s2, 7"); E("s_lshl_b32 s2, s2, 5"); E("s_or_b32 s2, s2, s3")
E("s_load_dwordx16 s[80:95], s[0:1], 0")
E("s_load_dwordx4 s[96:99], s[0:1], 64")
E("s_load_dwordx2 s[100:101], s[0:1], 80")
PF=int(opts.get('pf',1))
if PF:
    E("s_getpc_b64 s[4:5]"); L("L_pc")
    E("v_lshlrev_b32 v2, 6, v0"); E("v_min_u32 v2, L_codeend-L_pc-4, v2")
    E("v_mov_b32 v3, s5"); E("v_add_co_u32 v2, vcc, s4, v2"); E("v_addc_co_u32 v3, vcc, 0, v3, vcc")
    E("global_load_dword v247, v[2:3], off")
E("v_lshrrev_b32 v1, 6, v0"); E(f"v_and_b32 v{vLANE}, 63, v0")
E(f"s_and_b32 {sLO}, s2, 7"); E(f"v_readfirstlane_b32 s3, v1"); E(f"s_lshr_b32 {sHI}, s2, 3")
E(f"s_and_b32 {sW}, s3, 3")
E(f"v_lshlrev_b32 v{vL16}, 4, v{vLANE}"); E(f"v_and_b32 v{vN}, 15, v{vLANE}"); E(f"v_lshrrev_b32 v{vG}, 4, v{vLANE}")
E(f"s_lshr_b32 s4, {sHI}, 3")
E(f"s_and_b32 s5, {sHI}, 7")
E(f"s_lshl_b32 {sETA}, s4, 3"); E(f"s_add_u32 {sETA}, {sETA}, {sLO}")
E(f"s_add_u32 {sT}, {sHI}, 1"); E(f"s_and_b32 {sT}, {sT}, 3"); E(f"s_and_b32 {sT2}, {sHI}, 28"); E(f"s_add_u32 s6, {sT}, {sT2}")
E("s_cmp_lt_u32 s6, 28"); E(f"s_cselect_b32 {sA1}, 1, 0"); E("s_lshl_b32 s6, s6, 3"); E(f"s_add_u32 s6, s6, {sLO}")
E(f"s_xor_b32 {sT}, {sT}, 2"); E(f"s_add_u32 {sT2}, {sT2}, 4"); E(f"s_and_b32 {sT2}, {sT2}, 28"); E(f"s_add_u32 {sT}, {sT}, {sT2}")
E(f"s_mul_i32 s7, {sLO}, 28"); E(f"s_add_u32 s7, s7, {sT}"); E(f"s_lshl_b32 {sT2}, {sT}, 3"); E(f"s_add_u32 {sT2}, {sT2}, {sLO}")
E(f"s_cmp_lt_u32 {sT}, 28"); E(f"s_cselect_b32 {sA2}, 1, 0"); E(f"s_cselect_b32 s7, s7, {sT2}")
E(f"s_mov_b32 {sLAY}, 0"); E(f"s_mov_b32 {sBUD}, 40000")
E("s_waitcnt lgkmcnt(0)")
srd(SWQ,86,1024*4096*2)
E("s_cmp_ge_u32 s3, 4"); E("s_cbranch_scc1 L_common")
def tile_voff(v,stride):
    E(f"v_lshrrev_b32 v{v}, 2, v{vLANE}"); E(f"v_mul_u32_u24 v{v}, {stride}, v{v}")
    E(f"v_and_b32 v{v+1}, 3, v{vLANE}"); E(f"v_lshl_add_u32 v{v}, v{v+1}, 4, v{v}")
    E(f"s_lshl_b32 {sT2}, {sW}, 6"); E(f"v_add_u32 v{v}, {sT2}, v{v}")
SWZ=int(opts.get('swz',0))
def swz_fix():
    if SWZ==1:
        E(f"s_bfe_u32 {sT2}, {sT}, 0x20008"); E(f"s_sub_u32 {sT2}, {sW}, {sT2}"); E(f"s_mul_i32 {sT2}, {sT2}, 192"); E(f"s_add_u32 {sT}, {sT}, {sT2}")
    if SWZ==2:
        E(f"s_bfe_u32 {sT2}, {sT}, 0x10008"); E(f"s_lshl_b32 {sT2}, {sT2}, 7"); E(f"s_sub_u32 {sT}, {sT}, {sT2}")
        E(f"s_lshr_b32 {sT2}, {sW}, 1"); E(f"s_lshl_b32 {sT2}, {sT2}, 7"); E(f"s_add_u32 {sT}, {sT}, {sT2}")
def tile_loads(dst,v,srdn,step):
    if step>4096: swz_fix()
    for i in range(8):
        E(f"buffer_load_dwordx4 {vr(dst+4*i,4)}, v{v}, {srdn}, {sT} offen"+(" nt" if NT and (int(opts.get('ntm','63'))>>(dst//32))&1 else ""))
        if i<7: E(f"s_add_u32 {sT}, {sT}, {step}")
RWQ,RK,RV,RWO,RW1,RW2,RB,RD=0,32,64,96,128,160,192,208
def ld_wq():
    tile_voff(RD,8192); E(f"s_lshl_b32 {sT}, {sLO}, 20"); E(f"s_lshl_b32 {sT2}, {sHI}, 8"); E(f"s_add_u32 {sT}, {sT}, {sT2}")
    tile_loads(RWQ,RD,SWQ,16*8192)
ld_wq()
L("L_common")
E(f"s_mov_b32 s1, {EPO:#x}"); E("s_load_dword s0, s[100:101], s1")
srd(WS,100,WS_REC); srd(SK,82,8*4*4096*128*2); srd(SV,84,8*4*4096*128*2); srd(SWO,88,4096*1024*2)
srd(SW1,92,1024*3584*2); srd(SW2,94,3584*1024*2); srd(SX,80,16384); srd(SOUT,96,16384); srd(SDBG,98,256)
def lin(dst,base,terms):
    E(f"s_mov_b32 {dst}, {base:#x}")
    for r,sh in terms:
        E(f"s_lshl_b32 {sT2}, {r}, {sh}"); E(f"s_add_u32 {dst}, {dst}, {sT2}")
E("s_cmp_ge_u32 s3, 4"); E("s_cbranch_scc1 L_common2")
def kv_base():
    lin(sT,3072*256,[(sLO,22),("s4",20),("s5",15)])
def ld_k():
    kv_base(); E(f"s_lshl_b32 {sT2}, {sW}, 13"); E(f"s_add_u32 {sT}, {sT}, {sT2}")
    tile_loads(RK,vL16,SK,1024)
def ld_v():
    tile_voff(RD+2,256); kv_base(); tile_loads(RV,RD+2,SV,16*256)
def ld_wo():
    tile_voff(RD+4,2048); lin(sT,0,[(sETA,18),("s5",8)]); E(f"s_xor_b32 {sT}, {sT}, 0x200"); tile_loads(RWO,RD+4,SWO,16*2048)
def inact(flag,v):
    E(f"s_cmp_eq_u32 {flag}, 1"); E(f"s_cselect_b32 {sT}, {sT}, 0"); E(f"s_cselect_b32 {sT2}, 0, 0x40000000"); E(f"v_or_b32 v{v}, {sT2}, v{v}")
def ld_w1():
    tile_voff(RD+6,7168); E(f"s_mul_i32 {sT}, {sLO}, {128*7168}"); E(f"s_lshr_b32 {sT2}, s6, 3"); E(f"s_lshl_b32 {sT2}, {sT2}, 8"); E(f"s_add_u32 {sT}, {sT}, {sT2}")
    inact(sA1,RD+6); tile_loads(RW1,RD+6,SW1,16*7168)
def ld_w2():
    tile_voff(RD+4,2048); E(f"s_lshr_b32 {sT}, s7, 3"); E(f"s_lshl_b32 {sT}, {sT}, 18"); E(f"s_and_b32 {sT2}, s7, 7"); E(f"s_lshl_b32 {sT2}, {sT2}, 8"); E(f"s_add_u32 {sT}, {sT}, {sT2}"); inact(sA2,RD+4); tile_loads(RW2,RD+4,SW2,16*2048)
sched={0:[[ld_k,ld_v,ld_wo,ld_w1,ld_w2],[],[],[],[]],
       1:[[ld_k,ld_v],[ld_wo],[ld_w1],[ld_w2],[]],
       2:[[ld_k],[ld_v],[ld_wo],[ld_w1],[ld_w2]],
       3:[[ld_k,ld_v],[ld_wo,ld_w1],[ld_w2],[],[]],4:[[],[],[],[],[]]}[4]
order=['wq']; names={ld_k:'k',ld_v:'v',ld_wo:'wo',ld_w1:'w1',ld_w2:'w2'}
q=['wq']*8
def issue(pt):
    for f in sched[pt]:
        f(); q.extend([names[f]]*8)
def iss(f):
    f(); q.extend([names[f]]*8)
def ack(tag=None):
    if tag: E(f"s_cmp_eq_u32 {sLAY}, 0"); E(f"s_cbranch_scc1 L_na_{tag}")
    if int(opts.get('ak',1)): E("s_waitcnt vmcnt(0)")
    if int(opts.get('ad',0)): E(f"s_sleep {opts['ad']}")
    if tag: L(f"L_na_{tag}")
    E("s_barrier")
def wait_for(nm):
    last=max(i for i,x in enumerate(q) if x==nm); n=len(q)-1-last
    E(f"s_waitcnt vmcnt({n})")
    stamp2({'wq':11,'clr':12,'k':13,'v':14,'wo':15,'w1':16,'w2':17,'c1':18}[nm])
EXP=opts.get('exp','')
SC=int(opts.get('sc',0)); YB=int(opts.get('yb',1)) or SC in (5,7,8)
if SC in (1,2) and not EXP: iss(ld_k)
L("L_common2")
lin(S['pQP'],QP,[(sHI,11),(sLO,8)]); lin(S['pAP'],AP,[("s4",14),(sLO,11),("s5",8)]); lin(S['pAST'],AST,[("s4",9),(sLO,6),("s5",3)])
lin(S['pOP'],OP,[("s5",16),(sETA,11)]); E(f"s_xor_b32 {S['pOP']}, {S['pOP']}, 0x20000"); lin(S['pF1'],F1P,[("s6",11)])
E(f"s_lshr_b32 {sC0}, s7, 3"); E(f"s_and_b32 {sC1}, s7, 7"); lin(S['pF2'],F2P,[(sC1,16),(sC0,11)])
lin(S['pQST'],QST,[("s2",7)]); lin(S['pF1ST'],F1ST,[("s6",7)])
E(f"s_lshl_b32 {sT}, {sW}, 6"); E(f"v_lshl_add_u32 v249, v{vG}, 4, {sT}")
E(f"v_lshl_add_u32 v{vAQ}, v{vN}, 16, v249")
E(f"s_lshl_b32 {sT}, {sW}, 9"); E(f"v_lshl_add_u32 v{vAL}, v{vG}, 7, {sT}"); E(f"v_lshl_add_u32 v{vAL}, v{vN}, 4, v{vAL}")
E(f"s_mul_i32 {sT}, s6, 1792"); E(f"s_sub_u32 {sT}, {F1CS-F1P:#x}, {sT}")
setexec(0x01000100,0x01000100); E(f"v_add_u32 v{vAL}, {sT}, v249"); fullexec()
if STAMP:
    for i in range(20): E(f"s_mov_b32 s{STS+i}, 0")
stamp(0)
if EXP:
    E("s_cmp_ge_u32 s3, 4"); E("s_cbranch_scc1 L_fin")
    E("s_waitcnt vmcnt(0)"); stamp(1)
    for i,f in enumerate([ld_k,ld_v,ld_wo,ld_w1,ld_w2,ld_wq,ld_k]):
        f(); E("s_waitcnt vmcnt(0)"); stamp(2+i)
    E("s_branch L_fin")
    for nm in ('k','v','wo','w1','w2'): q.extend([nm]*8)
vEP=248
E("s_cmp_lt_u32 s3, 4"); E("s_cbranch_scc1 L_wt")
sec('wt'); L("L_wt")
def flag_store(word):
    lin(sT,FLG+word*4,[("s2",7)])
    setexec(1,0); E(f"buffer_store_dword v{vEP}, off, {WS}, {sT} sc1"); fullexec()
M8=(0x00FF00FF,0x00FF00FF); M9=(0x01FF01FF,0x01FF01FF)
def bump(keys):
    for k in keys: E(f"s_add_u32 {S[k]}, {S[k]}, {LS:#x}")
def l0only(tag):
    E(f"s_cmp_lg_u32 {sLAY}, 0"); E(f"s_cbranch_scc1 L_skip_{tag}")
def bounce(nm,R,natural,nxt=None):
    t=RD+8
    E(f"s_mul_i32 {sT}, {sW}, {BSZ}"); E(f"s_add_u32 {sT}, {sT}, {BOUNCE}")
    E(f"v_add_u32 v{t}, {sT}, v{vL16}")
    E(f"v_lshrrev_b32 v{t+1}, 2, v{vN}"); E(f"v_lshl_add_u32 v{t+1}, v{vG}, {3 if natural else 2}, v{t+1}")
    E(f"v_lshlrev_b32 v{t+1}, 6, v{t+1}"); E(f"v_and_b32 v{t+2}, 3, v{vLANE}"); E(f"v_lshl_add_u32 v{t+1}, v{t+2}, 4, v{t+1}")
    E(f"v_add_u32 v{t+1}, {sT}, v{t+1}")
    wait_for(nm)
    if nm=='v' and YB: E("s_barrier")
    if nxt: iss(nxt)
    for i in range(8): E(f"ds_write_b128 v{t}, {vr(R+4*i,4)} offset:{i*1024}")
    E("s_waitcnt lgkmcnt(0)")
    for tt in range(2):
        for k in range(4):
            for u in range(2):
                E(f"ds_read_b64_tr_b16 {vr(R+16*tt+4*k+2*u,2)}, v{t+1} offset:{k*2048+u*(256 if natural else 1024)+8*tt}")
    E("s_waitcnt lgkmcnt(0)")
def bounce_k():
    t=RD+8
    E(f"s_mul_i32 {sT}, {sW}, {BSZ}"); E(f"s_add_u32 {sT}, {sT}, {BOUNCE}")
    E(f"v_mul_u32_u24 v{t}, 272, v{vG}"); E(f"v_lshl_add_u32 v{t}, v{vN}, 4, v{t}"); E(f"v_add_u32 v{t}, {sT}, v{t}")
    E(f"v_mul_u32_u24 v{t+1}, 272, v{vN}"); E(f"v_lshl_add_u32 v{t+1}, v{vG}, 4, v{t+1}"); E(f"v_add_u32 v{t+1}, {sT}, v{t+1}")
    wait_for('k')
    if SC in (0,7,8): iss(ld_v)
    for i in range(8): E(f"ds_write_b128 v{t}, {vr(RK+4*i,4)} offset:{i*1088}")
    E("s_waitcnt lgkmcnt(0)")
    for tt in range(2):
        for k in range(4): E(f"ds_read_b128 {vr(RK+16*tt+4*k,4)}, v{t+1} offset:{tt*16*272+k*64}")
    E("s_waitcnt lgkmcnt(0)")
def read_b(base):
    for k in range(4): E(f"ds_read_b128 {vr(RB+4*k,4)}, v{vL16} offset:{base+k*1024}")
def mm(R):
    for k in range(4):
        E(f"s_waitcnt lgkmcnt({3-k})" if not STAMP else "s_waitcnt lgkmcnt(0)")
        for tt in range(2): mfma(RD+4*tt,R+16*tt+4*k,RB+4*k,None if k==0 else RD+4*tt)
def pack_store(src,va,so,mask):
    for i in range(4): E(f"v_cvt_pk_bf16_f32 v{RD+8+i}, v{src+2*i}, v{src+2*i+1}")
    if mask is M9: E(f"s_mov_b32 exec_lo, {sC0}"); E(f"s_mov_b32 exec_hi, {sC0}")
    else: setexec(*mask)
    E(f"buffer_store_dwordx4 {vr(RD+8,4)}, v{va}, {WS}, {so} offen sc1"); fullexec(); q.append('st')
def gemm_phase(R,p,va,so,mask):
    read_b(OPB[p]); mm(R); nop(8); pack_store(RD,va,so,mask)
E(f"s_mov_b32 {sC0}, 0x01FF01FF"); E("s_waitcnt lgkmcnt(0)")
if SC==5: E("s_barrier"); iss(ld_k)
L("L_wloop")
l0only("wq"); bounce('wq',RWQ,False,ld_v if SC in (1,2,5) else ld_k); L("L_skip_wq")
E("s_barrier")
stamp(1)
gemm_phase(RWQ,0,vAQ,S['pQP'],M9)
stamp(2)
ack("q")
l0only("k"); bounce_k(); bounce('v',RV,False,ld_wo if SC!=1 else None); L("L_skip_k")
E("s_barrier")
stamp(3)
def at_bar(tag,f):
    l0only(tag); iss(f); L("L_skip_"+tag)
def l1clear():
    for i in range(4): E(f"v_mov_b32 v{240+i}, -1")
    E(f"s_lshl_b32 {sT}, s6, 2"); E(f"s_add_u32 {sT}, {sT}, {sW}"); E(f"s_mul_i32 {sT}, {sT}, 3072"); E(f"s_add_u32 {sT}, {sT}, {LS:#x}")
    E(f"v_mov_b32 v244, v{vL16}"); inact(sA1,244)
    for i in range(3): E(f"buffer_store_dwordx4 v[240:243], v244, {WS}, {sT} offen offset:{i*1024} sc1"); q.append('c1')
read_b(OPB[1])
if SC==1: at_bar("iwo",ld_wo)
if SC in (2,5,7,8): at_bar("iw1",ld_w1)
mm(RK);
E(f"s_mov_b32 {sT}, 0x3e0293ee")
nop(7)
d=RD; t=RD+8
E(f"v_max3_f32 v{t}, v{d}, v{d+1}, v{d+2}"); E(f"v_max3_f32 v{t+1}, v{d+3}, v{d+4}, v{d+5}")
E(f"v_max3_f32 v{t}, v{t}, v{d+6}, v{d+7}"); E(f"v_max_f32 v{t}, v{t}, v{t+1}")
def xrow(op,a,b):
    for sw in ("16","32"):
        E(f"v_mov_b32 v{b}, v{a}"); nop(2); E(f"v_permlane{sw}_swap_b32 v{a}, v{b}"); E(f"{op} v{a}, v{a}, v{b}")
xrow("v_max_f32",t,t+1)
E(f"v_mul_f32 v{t}, {sT}, v{t}")
for i in range(8): E(f"v_fma_f32 v{d+i}, v{d+i}, {sT}, -v{t}")
for i in range(8): E(f"v_exp_f32 v{d+i}, v{d+i}")
nop(1)
for i in range(4): E(f"v_cvt_pk_bf16_f32 v{t+4+i}, v{d+2*i}, v{d+2*i+1}")
E(f"s_lshl_b32 {sT}, {sW}, 10"); E(f"v_add_u32 v{t+2}, {sT}, v{vL16}")
E(f"ds_write_b128 v{t+2}, {vr(t+4,4)} offset:{PB}")
E(f"v_add_f32 v{d}, v{d}, v{d+1}"); E(f"v_add_f32 v{d+2}, v{d+2}, v{d+3}"); E(f"v_add_f32 v{d+4}, v{d+4}, v{d+5}"); E(f"v_add_f32 v{d+6}, v{d+6}, v{d+7}")
E(f"v_add_f32 v{d}, v{d}, v{d+2}"); E(f"v_add_f32 v{d+4}, v{d+4}, v{d+6}"); E(f"v_add_f32 v{t+1}, v{d}, v{d+4}")
xrow("v_add_f32",t+1,t+3)
E(f"s_lshl_b32 {sT}, {sW}, 3"); E(f"v_lshl_add_u32 v{t+2}, v{vN}, 5, {sT}")
setexec(0xFFFF,0); E(f"ds_write_b64 v{t+2}, {vr(t,2)} offset:{SMB}"); fullexec()
E("s_waitcnt lgkmcnt(0)")
E("s_barrier")
E(f"v_lshlrev_b32 v249, 5, v{vN}")
read_b(PB)
E(f"ds_read_b128 v[240:243], v249 offset:{SMB}"); E(f"ds_read_b128 v[244:247], v249 offset:{SMB+16}")
for k in range(4):
    E(f"s_waitcnt lgkmcnt({5-k})" if not STAMP else "s_waitcnt lgkmcnt(0)")
    for tt in range(2): mfma(RD+8*k+4*tt,RV+16*tt+4*k,RB+4*k,None)
E("s_waitcnt lgkmcnt(0)")
E("v_max3_f32 v248, v240, v242, v244"); E("v_max_f32 v248, v248, v246")
for i in range(4): E(f"v_sub_f32 v{240+2*i}, v{240+2*i}, v248")
for i in range(4): E(f"v_exp_f32 v{240+2*i}, v{240+2*i}")
nop(1)
E("v_mul_f32 v249, v240, v241")
for i in range(1,4): E(f"v_fmac_f32 v249, v{240+2*i}, v{241+2*i}")
for i in range(8): E(f"v_mul_f32 v{RD+i}, v240, v{RD+i}")
for k in range(1,4):
    for i in range(8): E(f"v_fmac_f32 v{RD+i}, v{240+2*k}, v{RD+8*k+i}")
pack_store(RD,vAQ,S['pAP'],M8)
E(f"v_lshlrev_b32 v240, 11, v{vN}")
E(f"s_lshl_b32 {sT}, {sW}, 1"); E(f"s_lshl_b32 exec_lo, 3, {sT}"); E("s_mov_b32 exec_hi, 0")
E(f"buffer_store_dwordx2 v[248:249], v240, {WS}, {S['pAST']} offen sc1"); fullexec(); q.append('st')
stamp(4)
ack("a")
l0only("wo")
JIT=int(opts.get('jit',0)); BOTH=int(opts.get('both',0))
if BOTH:
    if BOTH==2: l1clear()
    iss(ld_w1); iss(ld_w2)
    if BOTH==1: l1clear()
    bounce('wo',RWO,True); bounce('w1',RW1,False)
elif JIT: bounce('wo',RWO,True,ld_w1)
elif SC==0: bounce('wo',RWO,True,ld_w1); bounce('w1',RW1,False,None if 'w2d' in opts else ld_w2)
elif SC in (7,8): bounce('wo',RWO,True); bounce('w1',RW1,False,ld_w2 if SC==7 else None)
else:
    if SC==5: iss(ld_w2)
    l1clear(); bounce('wo',RWO,True)
if SC in (2,5): bounce('w1',RW1,False)
L("L_skip_wo")
E("s_barrier")
stamp(5)
if SC==1: at_bar("iw1",ld_w1)
if SC in (2,8) or opts.get('w2d')=='1': at_bar("iw2",ld_w2)
gemm_phase(RWO,2,vAL,S['pOP'],M8)
ack("o")
l0only("w1")
if opts.get('w2d')=='2': iss(ld_w2)
if SC in (0,7,8) and BOTH in (0,3): l1clear()
if JIT: bounce('w1',RW1,False,ld_w2); wait_for('c1')
elif SC==1: bounce('w1',RW1,False)
else: bounce('w2',RW2,False); E("s_waitcnt vmcnt(0)"); stamp2(18)
L("L_skip_w1")
E("s_barrier")
stamp(6)
if SC==1: at_bar("iw2",ld_w2)
E(f"s_cmp_eq_u32 {sA1}, 0"); E("s_cbranch_scc1 L_nof1")
gemm_phase(RW1,3,vAL,S['pF1'],M9); q.pop()
L("L_nof1")
if SC==1 or JIT: ack("f"); l0only("w2"); bounce('w2',RW2,False); L("L_skip_w2")
else: ack()
E("s_barrier")
stamp(7)
E(f"s_cmp_eq_u32 {sA2}, 0"); E("s_cbranch_scc1 L_nof2")
gemm_phase(RW2,4,vAL,S['pF2'],M8)
L("L_nof2")
stamp(8)
ack()
bump(['pQP','pAP','pAST','pOP','pF1','pF2']); E(f"s_mov_b32 {sC0}, 0x00FF00FF")
E(f"s_add_u32 {sLAY}, {sLAY}, 1"); E(f"s_cmp_lt_u32 {sLAY}, 2"); E("s_cbranch_scc1 L_wloop")
E("s_branch L_fin")
sec('cm')
G=0; X=64; MP=72; A1=80; AG=88; D0=92; D1=96; D2=100; D3=104; T=108; AW=160
vG1,vCS,vST,vG3,vAST,vLW,vSTa,vOW,vONE=140,141,142,143,144,145,146,147,148
E(f"v_and_b32 v{T}, 7, v{vN}"); E(f"v_lshrrev_b32 v{T+1}, 3, v{vN}")
E(f"v_lshlrev_b32 v{vOW}, 11, v{T}"); E(f"v_lshl_add_u32 v{vOW}, v{vG}, 3, v{vOW}")
lin(sT,0,[(sLO,8),(sW,6)]); E(f"v_add_u32 v{vOW}, {sT}, v{vOW}")
E(f"buffer_load_dwordx2 v[{T+8}:{T+9}], v{vOW}, {SX}, 0 offen"); E(f"buffer_load_dwordx2 v[{T+10}:{T+11}], v{vOW}, {SX}, 0 offen offset:32")
for i in range(4): E(f"v_mov_b32 v{G+i}, -1")
E(f"s_cmp_lg_u32 {sW}, 1"); E("s_cbranch_scc1 L_cl2")
E(f"v_lshlrev_b32 v{T+2}, 4, v{vN}"); E(f"v_lshl_add_u32 v{T+3}, v{vG}, 16, v{T+2}")
E(f"buffer_store_dwordx4 {vr(G,4)}, v{T+3}, {WS}, {S['pQP']} offen sc1")
E(f"s_add_u32 {sT}, {S['pQP']}, 0x40000"); E(f"buffer_store_dwordx4 {vr(G,4)}, v{T+3}, {WS}, {sT} offen sc1")
E(f"s_add_u32 {sT}, {S['pQP']}, 0x80000"); E(f"v_add_u32 v{T+3}, {sT}, v{T+2}")
setexec(0xFF0000,0); E(f"v_add_u32 v{T+3}, {S['pQST']}, v{T+2}")
lin(sT,AST,[(sLO,11),("s4",9),("s5",6)]); setexec(0,0xF); E(f"v_add_u32 v{T+3}, {sT}, v{T+2}")
setexec(0xFFFFFF,0xF); E(f"buffer_store_dwordx4 {vr(G,4)}, v{T+3}, {WS}, 0 offen sc1"); fullexec()
L("L_cl2")
lin(sT,AP,[(sLO,16),("s4",14),("s5",11)])
E(f"s_cmp_eq_u32 {sW}, 0"); E(f"s_cselect_b32 {sT}, {S['pOP']}, {sT}")
E(f"s_cmp_eq_u32 {sW}, 2"); E(f"s_cselect_b32 {sT}, {S['pF1']}, {sT}")
E(f"s_cmp_eq_u32 {sW}, 3"); E(f"s_cselect_b32 {sT}, {S['pF2']}, {sT}")
for i in range(2): E(f"buffer_store_dwordx4 {vr(G,4)}, v{vL16}, {WS}, {sT} offen offset:{i*1024} sc1")
E(f"s_bitcmp1_b32 {sW}, 0"); E("s_cbranch_scc1 L_nsm")
lin(sT,F1CS,[("s6",8)])
E(f"s_cmp_eq_u32 {sW}, 0"); E(f"s_cselect_b32 {sT}, {S['pF1ST']}, {sT}"); E(f"s_cselect_b32 exec_lo, 0xff, -1"); E("s_and_b32 exec_lo, exec_lo, 0xffff"); E("s_mov_b32 exec_hi, 0")
E(f"buffer_store_dwordx4 {vr(G,4)}, v{vL16}, {WS}, {sT} offen sc1")
L("L_nsm"); fullexec(); stamp2(12)
if SC==5: E("s_barrier")
E(f"v_lshlrev_b32 v{vSTa}, 3, v{T}"); setexec(0xFFFFFFFF,0); E(f"v_add_u32 v{vSTa}, 4, v{vSTa}")
fullexec()
lin(S['gF2'],(F2P-LS)&0xffffffff,[(sLO,16)]); lin(S['gOP'],OP,[(sLO,16)]); lin(S['gQP'],QP,[(sLO,16),("s4",14)]); lin(S['gQCS'],QP+8*65536,[("s4",14)])
lin(S['gQST'],QST,[(sHI,10),(sLO,3)]); lin(S['gAP'],AP,[(sLO,16),("s4",14)]); lin(S['gAST'],AST,[(sLO,11),("s4",9)])
E(f"s_lshr_b32 {sC0}, s7, 3")
lin(S['gF1'],F1P,[(sC0,14)]); lin(S['gF1CS'],F1CS,[(sC0,11)]); lin(S['gF1ST'],F1ST,[(sC0,10)])
E(f"v_and_b32 v{T+3}, 2, v{vG}"); E(f"v_add_u32 v{T+3}, v{T+3}, v{T+1}")
E(f"v_and_b32 v{T+4}, 1, v{vG}")
E(f"s_lshl_b32 {sT}, {sW}, 9"); E(f"v_lshl_add_u32 v{vG1}, v{T+3}, 11, {sT}"); E(f"v_lshl_add_u32 v{vG1}, v{T+4}, 7, v{vG1}"); E(f"v_lshl_add_u32 v{vG1}, v{T}, 4, v{vG1}")
E(f"s_lshl_b32 {sT}, {sW}, 6"); E(f"v_lshl_add_u32 v{vCS}, v{T+3}, 8, {sT}"); E(f"v_lshl_add_u32 v{vCS}, v{T+4}, 4, v{vCS}")
E(f"v_lshl_add_u32 v{vST}, v{vG}, 1, v{T+1}"); E(f"v_lshlrev_b32 v{vST}, 7, v{vST}")
E(f"v_lshl_add_u32 v149, v{T}, 3, v{vST}")
E(f"s_lshl_b32 {sT}, {sW}, 12"); E(f"v_lshl_add_u32 v{vG3}, v{vG}, 9, {sT}"); E(f"v_lshl_add_u32 v{vG3}, v{vN}, 4, v{vG3}")
E(f"s_lshl_b32 {sT}, {sW}, 7"); E(f"v_lshl_add_u32 v{vAST}, v{T+1}, 6, {sT}"); E(f"v_lshl_add_u32 v{vAST}, v{vG}, 4, v{vAST}")
E(f"s_lshl_b32 {sT}, {sW}, 5"); E(f"v_lshl_add_u32 v{vLW}, v{vG}, 3, {sT}"); E(f"v_lshl_add_u32 v{vLW}, v{vN}, 8, v{vLW}")
E(f"s_lshl_b32 {sT}, {sW}, 10"); E(f"v_add_u32 v150, {sT}, v{vL16}")
E(f"v_mov_b32 v{vONE}, 1.0"); lin(sC0,4,[(sW,13)]); E(f"v_lshl_add_u32 v188, v{vLANE}, 7, {sC0}")
E(f"v_and_b32 v{T+5}, 1, v{vN}"); E(f"v_lshlrev_b32 v{T+5}, 4, v{T+5}"); E(f"v_mov_b32 v{T+6}, 0xffff"); E(f"v_lshlrev_b32 v{T+6}, v{T+5}, v{T+6}")
E(f"v_lshrrev_b32 v{T+5}, 1, v{vN}")
for i in range(8):
    E(f"v_cmp_eq_u32 vcc, {i}, v{T+5}"); nop(2); E(f"v_cndmask_b32 v{MP+i}, 0, v{T+6}, vcc")
for i in range(8): E(f"v_and_b32 v{A1+i}, 0x3f803f80, v{MP+i}")
E(f"v_cmp_eq_u32 vcc, 0, v{T+4}"); nop(2)
for i in range(4): E(f"v_cndmask_b32 v{AG+i}, v{A1+4+i}, v{A1+i}, vcc")
stamp2(13)
E("s_waitcnt vmcnt(5)"); E(f"s_cmp_eq_u32 {sW}, 1"); E("s_cbranch_scc1 L_x0p")
E("s_waitcnt vmcnt(3)"); E(f"s_cmp_lg_u32 {sW}, 3"); E("s_cbranch_scc1 L_x0p")
E("s_waitcnt vmcnt(2)"); L("L_x0p"); stamp2(14); E("s_waitcnt lgkmcnt(0)"); E("s_add_u32 s0, s0, 1"); E(f"v_mov_b32 v{vEP}, s0")
uid=[0]
def gld(dst,va,so,off,sel):
    if sel:
        uid[0]+=1
        E(f"v_max3_u32 v190, v{dst}, v{dst+1}, v{dst+2}"); E(f"v_max_u32 v190, v190, v{dst+3}"); E("v_cmp_eq_u32 vcc, -1, v190")
        E("s_mov_b64 exec, vcc"); E(f"s_cbranch_execz L_sl{uid[0]}")
    E(f"buffer_load_dwordx4 {vr(dst,4)}, v{va}, {WS}, {so} offen offset:{off} sc1")
    if sel: L(f"L_sl{uid[0]}"); fullexec()
def poll_end(tag,regs,loads):
    E(f"v_cmp_u_f32 {sP}, v{regs[0]}, v{regs[1]}")
    if len(regs)>2:
        E(f"v_cmp_u_f32 vcc, v{regs[2]}, v{regs[3]}"); E(f"s_or_b64 {sP}, {sP}, vcc")
    E(f"s_cmp_lg_u64 {sP}, 0"); E(f"s_cbranch_scc1 L_rt_{tag}")
    old=sec('rt'); L(f"L_rt_{tag}")
    E(f"s_sub_u32 {sBUD}, {sBUD}, 1"); E(f"s_cmp_lt_i32 {sBUD}, 0"); E(f"s_cbranch_scc1 L_pd_{tag}")
    if int(opts.get('slp',0)): E(f"s_sleep {opts['slp']}")
    loads(True); E("s_waitcnt vmcnt(0)"); E(f"s_branch L_pm_{tag}"); sec(old)
    L(f"L_pd_{tag}")
def ror8(r,n):
    for i in range(n): E(f"v_add_f32_dpp v{r+i}, v{r+i}, v{r+i} row_ror:8 row_mask:0xf bank_mask:0xf")
def g1(tag,key,ng):
    def loads(sel):
        E(f"s_mov_b32 {sT}, {S[key]}")
        for i in range(ng):
            for h in range(2): gld(G+8*i+4*h,vG1,sT,h*256,sel)
            if i<ng-1: E(f"s_add_u32 {sT}, {sT}, 8192")
    loads(False); L(f"L_pm_{tag}")
    for i in range(ng):
        for h in range(2):
            E(f"s_waitcnt vmcnt({2*ng-1-2*i-h})"); mfma(D0+4*h,AG,G+8*i+4*h,None if i==0 else D0+4*h)
    nop(8); poll_end(tag,[D0,D1],loads); ror8(D0,8)
    for i in range(8): E(f"v_add_f32 v{D0+i}, v{D0+i}, v{X+i}")
    for i in range(4): E(f"v_cvt_pk_bf16_f32 v{T+8+i}, v{D0+2*i}, v{D0+2*i+1}")
def x_out(p):
    for i in range(4):
        E(f"v_lshlrev_b32 v{X+2*i}, 16, v{T+8+i}"); E(f"v_and_b32 v{X+2*i+1}, 0xffff0000, v{T+8+i}")
    setexec(0xFF00FF00,0xFF00FF00)
    for i in range(4): E(f"v_mov_b32 v{T+8+i}, 0x3f803f80")
    fullexec()
    E(f"ds_write_b128 v150, {vr(T+8,4)} offset:{OPB[p]}"); E("s_waitcnt lgkmcnt(0)")
def gram(tag,p,key):
    for k in range(4): E(f"ds_read_b128 {vr(G+4*k,4)}, v{vL16} offset:{OPB[p]+k*1024}")
    E("s_waitcnt lgkmcnt(0)")
    for k in range(4): mfma(D0,G+4*k,G+4*k,None if k==0 else D0)
    nop(8)
    for i in range(1,4):
        setexec((1<<i)|(1<<(20+i)),0); E(f"v_mov_b32 v{D0}, v{D0+i}")
    setexec(0x00F0000F,0xFF); E(f"buffer_store_dword v{D0}, v{vSTa}, {WS}, {S[key]} offen sc1"); fullexec()
def ln_stats(r):
    ror8(D2,1); ror8(D3,1)
    E(f"s_mov_b32 {sT}, 0x3a800000")
    E(f"v_mul_f32 v{D2}, {sT}, v{D2}"); E(f"v_mul_f32 v{D3}, {sT}, v{D3}")
    E(f"v_fma_f32 v{D3}, -v{D2}, v{D2}, v{D3}"); E(f"v_max_f32 v{D3}, 0, v{D3}"); E(f"v_add_f32 v{D3}, 0x3727c5ac, v{D3}")
    E(f"v_rsq_f32 v{D3}, v{D3}")
def stat_mfma(r):
    E(f"v_mfma_f32_16x16x4_f32 {vr(D2,4)}, v{vONE}, v{r}, 0"); E(f"v_mfma_f32_16x16x4_f32 {vr(D3,4)}, v{vONE}, v{r+1}, 0")
sec('g1f')
E(f"s_cmp_lt_u32 {sLAY}, 2"); E("s_cbranch_scc1 L_nf"); E(f"s_cmp_lg_u32 {sHI}, {sW}"); E("s_cbranch_scc1 L_fin"); L("L_nf")
g1("f2",'gF2',7)
E(f"s_cmp_lt_u32 {sLAY}, 2"); E("s_cbranch_scc1 L_x0")
setexec(*M8)
E(f"buffer_store_dwordx2 v[{T+8}:{T+9}], v{vOW}, {SOUT}, 0 offen"); E(f"buffer_store_dwordx2 v[{T+10}:{T+11}], v{vOW}, {SOUT}, 0 offen offset:32")
fullexec()
sec('cm'); L("L_x0")
x_out(0)
stamp(1)
l0only("fs"); E(f"s_cmp_lg_u32 {sW}, 1"); E("s_cbranch_scc1 L_skip_fs")
E("s_waitcnt vmcnt(0)"); flag_store(0); stamp2(11); L("L_skip_fs")
E("s_barrier")
E(f"s_cmp_lg_u32 {sW}, 0"); E("s_cbranch_scc1 L_ng0"); gram("q",0,'pQST'); L("L_ng0")
stamp(7)
def flagpoll(tag,lo,hi,T=T,pre=False):
    E(f"s_mov_b32 {sT}, {FLG:#x}"); setexec(lo,hi)
    if pre: E(f"s_branch L_fc{tag}")
    L(f"L_fl{tag}")
    E(f"buffer_load_dword v{T+1}, v{T}, {WS}, {sT} offen sc1"); L(f"L_fc{tag}"); E("s_waitcnt vmcnt(0)")
    E(f"v_cmp_ne_u32 {sP}, v{vEP}, v{T+1}"); E(f"s_cmp_eq_u64 {sP}, 0"); E(f"s_cbranch_scc1 L_fd{tag}")
    E(f"s_sleep {opts.get('fs','2')}")
    E(f"s_sub_u32 {sBUD}, {sBUD}, 1"); E(f"s_cmp_gt_i32 {sBUD}, 0"); E(f"s_cbranch_scc1 L_fl{tag}")
    L(f"L_fd{tag}"); fullexec()
E("s_barrier")
l0only("flag")
lin(sC0,0,[("s4",13),(sW,11)]); E(f"v_lshl_add_u32 v{T}, v{vN}, 7, {sC0}")
E(f"s_lshl_b32 {sC0}, {sHI}, 10"); setexec(0xFF0000,0); E(f"v_lshl_add_u32 v{T}, v{vN}, 7, {sC0}"); fullexec()
flagpoll("g",0xFFFFFF,0)
L("L_skip_flag")
def l0delay(tag):
    if int(opts.get('l0d',0)): l0only("dl"+tag); E(f"s_sleep {opts['l0d']}"); L("L_skip_dl"+tag)
stamp(2)
CQ=176; CF=180
def ld_q(sel):
    l0only(f"cq0{sel}")
    for p in range(2):
        for i in range(2): gld(G+16+8*p+4*i,vG3,S['gQCS'],p*2048+i*256,sel)
    L(f"L_skip_cq0{sel}")
    E(f"buffer_load_dwordx2 v[{T}:{T+1}], v{vST}, {WS}, {S['gQST']} offen sc1")
    for p in range(2):
        for i in range(2): gld(G+8*p+4*i,vG3,S['gQP'],p*2048+i*256,sel)
ld_q(False)
if YB: l0only("y"); E("s_barrier"); L("L_skip_y")
L("L_pm_q")
E("s_waitcnt vmcnt(4)"); stat_mfma(T)
l0only("cq")
for c in range(4): mfma(CQ,A1+4*(c//2),G+16+4*c,None if c==0 else CQ)
L("L_skip_cq")
nop(8); ln_stats(T)
E(f"v_add_f32 v{T+2}, v{D3+1}, v{D2+1}")
for i in range(4): E(f"v_mul_f32 v{D0+i}, -v{D2}, v{CQ+i}")
nop(1)
for c in range(4):
    E(f"s_waitcnt vmcnt({3-c})"); mfma(D0,A1+4*(c//2),G+4*c,D0)
nop(8)
for i in range(4): E(f"v_mul_f32 v{D0+i}, v{D3}, v{D0+i}")
poll_end("q",[D0,T+2],ld_q)
def small_out(p):
    for i in range(2): E(f"v_cvt_pk_bf16_f32 v{T+8+i}, v{D0+2*i}, v{D0+2*i+1}")
    E(f"ds_write_b64 v{vLW}, {vr(T+8,2)} offset:{OPB[p]}"); E("s_waitcnt lgkmcnt(0)")
small_out(1)
stamp(3)
E("s_barrier")
l0only("c1")
E(f"s_cmp_lg_u32 {sW}, 1"); E("s_cbranch_scc1 L_skip_c1"); flag_store(1)
L("L_skip_c1")
E("s_barrier")
E("s_barrier")
l0delay("a")
stamp(8)
def ld_a(sel):
    E(f"buffer_load_dwordx4 {vr(T,4)}, v{vAST}, {WS}, {S['gAST']} offen sc1")
    for p in range(2):
        for i in range(2): gld(G+8*p+4*i,vG3,S['gAP'],p*2048+i*256,sel)
ld_a(False); L("L_pm_a")
E("s_waitcnt vmcnt(4)")
E(f"v_max_f32 v{T+4}, v{T}, v{T+2}"); xrow("v_max_f32",T+4,T+5)
E(f"v_sub_f32 v{T}, v{T}, v{T+4}"); E(f"v_sub_f32 v{T+2}, v{T+2}, v{T+4}"); E(f"v_exp_f32 v{T}, v{T}"); E(f"v_exp_f32 v{T+2}, v{T+2}"); nop(1)
E(f"v_cvt_pk_bf16_f32 v{T}, v{T}, v{T}"); E(f"v_cvt_pk_bf16_f32 v{T+2}, v{T+2}, v{T+2}")
for p in range(2):
    for i in range(2):
        for r in range(4): E(f"v_and_b32 v{AW+8*p+4*i+r}, v{MP+4*p+r}, v{T+2*i}")
E(f"v_and_b32 v{T}, 0xffff0000, v{T}"); E(f"v_and_b32 v{T+2}, 0xffff0000, v{T+2}")
for c in range(4):
    E(f"s_waitcnt vmcnt({3-c})"); mfma(D0,AW+4*c,G+4*c,None if c==0 else D0)
E(f"v_mul_f32 v{T+4}, v{T}, v{T+1}"); E(f"v_fmac_f32 v{T+4}, v{T+2}, v{T+3}"); xrow("v_add_f32",T+4,T+5)
E(f"v_rcp_f32 v{T+4}, v{T+4}"); nop(1)
E(f"v_readlane_b32 {sC0}, v{T+4}, 0"); E(f"v_readlane_b32 {sC1}, v{T+4}, 8"); nop(2)
E(f"v_mov_b32 v{T+4}, {sC1}"); setexec(0xFFFFFFFF,0); E(f"v_mov_b32 v{T+4}, {sC0}"); fullexec()
for i in range(4): E(f"v_mul_f32 v{D0+i}, v{T+4}, v{D0+i}")
poll_end("a",[D0,D0+1],ld_a)
l0only("c3")
E(f"s_mov_b32 {sT}, {FLG:#x}"); E(f"buffer_load_dword v189, v188, {WS}, {sT} offen sc1")
L("L_skip_c3")
small_out(2)
stamp(4)
E("s_barrier")
l0only("c2"); flagpoll("a",0xFFFFFFFF,0xFFFFFFFF,188,True); L("L_skip_c2")
E("s_barrier")
E(f"s_add_u32 {sT}, s2, {sW}"); E(f"s_add_u32 {sT}, {sT}, {sLAY}"); E(f"s_cmp_lg_u32 {sT}, 0"); E("s_cbranch_scc1 L_nep")
E(f"s_mov_b32 {sT}, {EPO:#x}"); setexec(1,0); E(f"buffer_store_dword v{vEP}, off, {WS}, {sT} sc1"); fullexec()
L("L_nep")
l0delay("o")
g1("o",'gOP',8)
x_out(3)
stamp(5)
E("s_barrier")
E(f"s_cmp_lg_u32 {sW}, 0"); E("s_cbranch_scc1 L_ng1"); E(f"s_cmp_eq_u32 {sA1}, 0"); E("s_cbranch_scc1 L_ng1"); gram("f",3,'pF1ST'); L("L_ng1")
E("s_barrier")
if SC==1 or JIT: l0delay("f")
E(f"s_cmp_eq_u32 {sA2}, 0"); E("s_cbranch_scc1 L_nog2")
E0,E1=AW,AW+4
def ld_h(sel):
    l0only(f"cf0{sel}")
    for i in range(2):
        for h in range(2): gld(G+16+8*i+4*h,vCS,S['gF1CS'],i*1024+h*32,sel)
    L(f"L_skip_cf0{sel}")
    E(f"buffer_load_dwordx2 v[{T}:{T+1}], v149, {WS}, {S['gF1ST']} offen sc1")
    E(f"s_add_u32 {sT}, {S['gF1']}, 8192")
    for i in range(2):
        for h in range(2): gld(G+8*i+4*h,vG1,S['gF1'] if i==0 else sT,h*256,sel)
ld_h(False); L("L_pm_h")
E("s_waitcnt vmcnt(4)"); stat_mfma(T)
l0only("cf")
for c in range(4): mfma(CF+4*(c%2),AG,G+16+4*c,None if c<2 else CF+4*(c%2))
L("L_skip_cf")
nop(8); ln_stats(T)
E(f"v_add_f32 v{T+2}, v{D3+1}, v{D2+1}")
for i in range(8): E(f"v_mul_f32 v{D0+i}, -v{D2}, v{CF+i}")
nop(1)
for c in range(4):
    E(f"s_waitcnt vmcnt({3-c})"); mfma(D0+4*(c%2),AG,G+4*c,D0+4*(c%2))
nop(8)
poll_end("h",[D0,D1,T+2,T+2],ld_h)
ror8(D0,8)
E(f"s_mov_b32 {sT}, 0xbfb8aa3b")
for i in range(8): E(f"v_mul_f32 v{D0+i}, v{D3}, v{D0+i}")
for i in range(8): E(f"v_mul_f32 v{E0+i}, {sT}, v{D0+i}")
for i in range(8): E(f"v_exp_f32 v{E0+i}, v{E0+i}")
for i in range(8): E(f"v_add_f32 v{E0+i}, 1.0, v{E0+i}")
for i in range(8): E(f"v_rcp_f32 v{E0+i}, v{E0+i}")
for i in range(8): E(f"v_mul_f32 v{D0+i}, v{E0+i}, v{D0+i}")
for i in range(4): E(f"v_cvt_pk_bf16_f32 v{T+8+i}, v{D0+2*i}, v{D0+2*i+1}")
E(f"ds_write_b128 v150, {vr(T+8,4)} offset:{OPB[4]}"); E("s_waitcnt lgkmcnt(0)")
L("L_nog2")
stamp(6)
E("s_barrier")
E("s_barrier")
bump(['pQST','pF1ST','gF2','gOP','gQP','gQCS','gQST','gAP','gAST','gF1','gF1CS','gF1ST'])
E(f"s_add_u32 {sLAY}, {sLAY}, 1")
sec('fin'); L("L_fin")
if STAMP:
    E(f"s_mov_b32 {sLAY}, 1"); stamp(9)
    E(f"s_mov_b32 s{STS+9}, {sBUD}")
    E("s_lshl_b32 s4, s2, 3"); E("s_add_u32 s4, s4, s3"); E("s_lshl_b32 s4, s4, 7"); E(f"s_add_u32 s4, s4, {STB_WS:#x}")
    E("v_mov_b32 v1, 0"); setexec(1,0)
    for i in range(20):
        E(f"v_mov_b32 v2, s{STS+i}"); E(f"buffer_store_dword v2, v1, {WS}, s4 offen offset:{4*i}"); nop(2)
    E("s_waitcnt vmcnt(0)")
L("L_end")
E("s_endpgm")
for k in ('cm','g1f','fin','wt','rt'): out.extend(secs[k])
out.append("L_codeend:")
out.append(""".section .rodata,"a"
.p2align 6
.amdhsa_kernel %s_kernel
  .amdhsa_next_free_vgpr 256
  .amdhsa_next_free_sgpr 102
  .amdhsa_accum_offset 256
  .amdhsa_group_segment_fixed_size 0
  .amdhsa_kernarg_size 88
  .amdhsa_user_sgpr_count 2
  .amdhsa_user_sgpr_kernarg_segment_ptr 1
  .amdhsa_system_sgpr_workgroup_id_x 1
.end_amdhsa_kernel"""%NAME)
open(sys.argv[1],"w").write("\n".join(out)+"\n")
```

```python
import sys
NAME="interleave_layers__sliding_block_cached__dense_activation_silu__decode"
opts=dict(a.split('=') for a in sys.argv[2:])
STAMP=int(opts.get('stamp',0))
STAGE=int(opts.get('stage',0))
NT=opts.get('nt','0')=='1'
out=[]
secs={k:[] for k in ('wt','cm','g1f','rt','fin')}; cur=[out]
def sec(k):
    old=cur[0]; cur[0]=secs[k] if isinstance(k,str) else k; return old
def E(s): cur[0].append("    "+s)
def L(s): cur[0].append(s+":")
def C(s): out.append("    ; "+s)
def nop(n): E(f"s_nop {n-1}")
LS=0x300000
AP,OP,F1P,F2P,QST,F1ST,AST,QP,F1CS=0,0x80000,0x100000,0x180000,0x200000,0x208000,0x210000,0x218000,0x2A8000
FLG,EPO=0x2C0000,0x2D0000
STB_WS=0x600000
WS_REC=0x800000
OPB=[0,4096,8192,12288,16384]; PB=20480; SMB=24576; BOUNCE=25600; BSZ=8704
LDS=61440
WS="s[8:11]"; SWQ="s[12:15]"; SK="s[16:19]"; SV="s[20:23]"; SWO="s[24:27]"; SW1="s[28:31]"; SW2="s[32:35]"
SX="s[36:39]"; SOUT="s[40:43]"; SDBG="s[44:47]"
sW,sLO,sHI,sLAY,sBUD,sT,sT2,sETA="s48","s49","s50","s51","s52","s53","s54","s55"
sA1,sA2="s56","s57"
offs=["pQP","pAP","pAST","pOP","pF1","pF2","pQST","pF1ST","gF2","gOP","gQP","gQCS","gQST","gAP","gAST","gF1","gF1CS","gF1ST"]
S={n:f"s{58+i}" for i,n in enumerate(offs)}
sC0,sC1="s76","s77"; sP="s[78:79]"; sP0,sP1="s78","s79"
STS=80
nst=[0]
def stamp(i):
    if STAMP:
        E("s_memrealtime s[100:101]"); E("s_waitcnt lgkmcnt(0)")
        E(f"s_cmp_eq_u32 {sLAY}, 0"); E(f"s_cselect_b32 s{STS+i}, s100, s{STS+i}");
        if STAMP!=2 or i==9: E(f"s_cselect_b32 s{STS+10+i}, s{STS+10+i}, s100")
def stamp2(i):
    if STAMP==2: E("s_memrealtime s[100:101]"); E("s_waitcnt lgkmcnt(0)"); E(f"s_mov_b32 s{STS+i}, s100")
def setexec(lo,hi):
    E(f"s_mov_b32 exec_lo, {lo:#x}"); E(f"s_mov_b32 exec_hi, {hi:#x}")
def fullexec(): E("s_mov_b64 exec, -1")
def vr(a,n): return f"v[{a}:{a+n-1}]"
def mfma(d,a,b,c): E(f"v_mfma_f32_16x16x32_bf16 {vr(d,4)}, {vr(a,4)}, {vr(b,4)}, {('0' if c is None else vr(c,4))}")
def srd(s,ptr,n):
    b=int(s[2:s.index(':')])
    E(f"s_mov_b32 s{b}, s{ptr}"); E(f"s_and_b32 s{b+1}, s{ptr+1}, 0xffff"); E(f"s_mov_b32 s{b+2}, {n:#x}"); E(f"s_mov_b32 s{b+3}, 0x20000")
vL16,vAQ,vAL,vLANE,vN,vG=255,254,253,252,251,250
hdr=open(f"cdna_kernels/{NAME}.s.ref").read().split("; Override")[0]
out.append(hdr.rstrip())
out.append(f"; @launch grid=(256,1,1) block=(512,1,1) lds={LDS}")
out.append('.amdgcn_target "amdgcn-amd-amdhsa--gfx950"\n.text\n.globl %s_kernel\n.p2align 8\n.type %s_kernel,@function\n%s_kernel:'%(NAME,NAME,NAME))
E("s_cmp_ge_u32 s2, 256"); E("s_cbranch_scc1 L_end")
if opts.get('perm'): E("s_lshr_b32 s3, s2, 3"); E("s_and_b32 s2, s2, 7"); E("s_lshl_b32 s2, s2, 5"); E("s_or_b32 s2, s2, s3")
E("s_load_dwordx16 s[80:95], s[0:1], 0")
E("s_load_dwordx4 s[96:99], s[0:1], 64")
E("s_load_dwordx2 s[100:101], s[0:1], 80")
PF=int(opts.get('pf',1))
if PF:
    E("s_getpc_b64 s[4:5]"); L("L_pc")
    E("v_lshlrev_b32 v2, 6, v0"); E("v_min_u32 v2, L_codeend-L_pc-4, v2")
    E("v_mov_b32 v3, s5"); E("v_add_co_u32 v2, vcc, s4, v2"); E("v_addc_co_u32 v3, vcc, 0, v3, vcc")
    E("global_load_dword v247, v[2:3], off")
E("v_lshrrev_b32 v1, 6, v0"); E(f"v_and_b32 v{vLANE}, 63, v0")
E(f"s_and_b32 {sLO}, s2, 7"); E(f"v_readfirstlane_b32 s3, v1"); E(f"s_lshr_b32 {sHI}, s2, 3")
E(f"s_and_b32 {sW}, s3, 3")
E(f"v_lshlrev_b32 v{vL16}, 4, v{vLANE}"); E(f"v_and_b32 v{vN}, 15, v{vLANE}"); E(f"v_lshrrev_b32 v{vG}, 4, v{vLANE}")
E(f"s_lshr_b32 s4, {sHI}, 3")
E(f"s_and_b32 s5, {sHI}, 7")
E(f"s_lshl_b32 {sETA}, s4, 3"); E(f"s_add_u32 {sETA}, {sETA}, {sLO}")
E(f"s_add_u32 {sT}, {sHI}, 1"); E(f"s_and_b32 {sT}, {sT}, 3"); E(f"s_and_b32 {sT2}, {sHI}, 28"); E(f"s_add_u32 s6, {sT}, {sT2}")
E("s_cmp_lt_u32 s6, 28"); E(f"s_cselect_b32 {sA1}, 1, 0"); E("s_lshl_b32 s6, s6, 3"); E(f"s_add_u32 s6, s6, {sLO}")
E(f"s_xor_b32 {sT}, {sT}, 2"); E(f"s_add_u32 {sT2}, {sT2}, 4"); E(f"s_and_b32 {sT2}, {sT2}, 28"); E(f"s_add_u32 {sT}, {sT}, {sT2}")
E(f"s_mul_i32 s7, {sLO}, 28"); E(f"s_add_u32 s7, s7, {sT}"); E(f"s_lshl_b32 {sT2}, {sT}, 3"); E(f"s_add_u32 {sT2}, {sT2}, {sLO}")
E(f"s_cmp_lt_u32 {sT}, 28"); E(f"s_cselect_b32 {sA2}, 1, 0"); E(f"s_cselect_b32 s7, s7, {sT2}")
E(f"s_mov_b32 {sLAY}, 0"); E(f"s_mov_b32 {sBUD}, 40000")
E("s_waitcnt lgkmcnt(0)")
srd(SWQ,86,1024*4096*2)
E("s_cmp_ge_u32 s3, 4"); E("s_cbranch_scc1 L_common")
def tile_voff(v,stride):
    E(f"v_lshrrev_b32 v{v}, 2, v{vLANE}"); E(f"v_mul_u32_u24 v{v}, {stride}, v{v}")
    E(f"v_and_b32 v{v+1}, 3, v{vLANE}"); E(f"v_lshl_add_u32 v{v}, v{v+1}, 4, v{v}")
    E(f"s_lshl_b32 {sT2}, {sW}, 6"); E(f"v_add_u32 v{v}, {sT2}, v{v}")
SWZ=int(opts.get('swz',0))
def swz_fix():
    if SWZ==1:
        E(f"s_bfe_u32 {sT2}, {sT}, 0x20008"); E(f"s_sub_u32 {sT2}, {sW}, {sT2}"); E(f"s_mul_i32 {sT2}, {sT2}, 192"); E(f"s_add_u32 {sT}, {sT}, {sT2}")
    if SWZ==2:
        E(f"s_bfe_u32 {sT2}, {sT}, 0x10008"); E(f"s_lshl_b32 {sT2}, {sT2}, 7"); E(f"s_sub_u32 {sT}, {sT}, {sT2}")
        E(f"s_lshr_b32 {sT2}, {sW}, 1"); E(f"s_lshl_b32 {sT2}, {sT2}, 7"); E(f"s_add_u32 {sT}, {sT}, {sT2}")
def tile_loads(dst,v,srdn,step):
    if step>4096: swz_fix()
    for i in range(8):
        E(f"buffer_load_dwordx4 {vr(dst+4*i,4)}, v{v}, {srdn}, {sT} offen"+(" nt" if NT and (int(opts.get('ntm','63'))>>(dst//32))&1 else ""))
        if i<7: E(f"s_add_u32 {sT}, {sT}, {step}")
RWQ,RK,RV,RWO,RW1,RW2,RB,RD=0,32,64,96,128,160,192,208
def ld_wq():
    tile_voff(RD,8192); E(f"s_lshl_b32 {sT}, {sLO}, 20"); E(f"s_lshl_b32 {sT2}, {sHI}, 8"); E(f"s_add_u32 {sT}, {sT}, {sT2}")
    tile_loads(RWQ,RD,SWQ,16*8192)
ld_wq()
L("L_common")
E(f"s_mov_b32 s1, {EPO:#x}"); E("s_load_dword s0, s[100:101], s1")
srd(WS,100,WS_REC); srd(SX,80,16384); srd(SOUT,96,16384)
def lin(dst,base,terms):
    E(f"s_mov_b32 {dst}, {base:#x}")
    for r,sh in terms:
        E(f"s_lshl_b32 {sT2}, {r}, {sh}"); E(f"s_add_u32 {dst}, {dst}, {sT2}")
E("s_cmp_ge_u32 s3, 4"); E("s_cbranch_scc1 L_common2")
srd(SK,82,8*4*4096*128*2); srd(SV,84,8*4*4096*128*2); srd(SWO,88,4096*1024*2); srd(SW1,92,1024*3584*2); srd(SW2,94,3584*1024*2)
def kv_base():
    lin(sT,3072*256,[(sLO,22),("s4",20),("s5",15)])
def ld_k():
    kv_base(); E(f"s_lshl_b32 {sT2}, {sW}, 13"); E(f"s_add_u32 {sT}, {sT}, {sT2}")
    tile_loads(RK,vL16,SK,1024)
def ld_v():
    tile_voff(RD+2,256); kv_base(); tile_loads(RV,RD+2,SV,16*256)
def ld_wo():
    tile_voff(RD+4,2048); lin(sT,0,[(sETA,18),("s5",8)]); E(f"s_xor_b32 {sT}, {sT}, 0x200"); tile_loads(RWO,RD+4,SWO,16*2048)
def inact(flag,v):
    E(f"s_cmp_eq_u32 {flag}, 1"); E(f"s_cselect_b32 {sT}, {sT}, 0"); E(f"s_cselect_b32 {sT2}, 0, 0x40000000"); E(f"v_or_b32 v{v}, {sT2}, v{v}")
def ld_w1():
    tile_voff(RD+6,7168); E(f"s_mul_i32 {sT}, {sLO}, {128*7168}"); E(f"s_lshr_b32 {sT2}, s6, 3"); E(f"s_lshl_b32 {sT2}, {sT2}, 8"); E(f"s_add_u32 {sT}, {sT}, {sT2}")
    inact(sA1,RD+6); tile_loads(RW1,RD+6,SW1,16*7168)
def ld_w2():
    tile_voff(RD+4,2048); E(f"s_lshr_b32 {sT}, s7, 3"); E(f"s_lshl_b32 {sT}, {sT}, 18"); E(f"s_and_b32 {sT2}, s7, 7"); E(f"s_lshl_b32 {sT2}, {sT2}, 8"); E(f"s_add_u32 {sT}, {sT}, {sT2}"); inact(sA2,RD+4); tile_loads(RW2,RD+4,SW2,16*2048)
sched={0:[[ld_k,ld_v,ld_wo,ld_w1,ld_w2],[],[],[],[]],
       1:[[ld_k,ld_v],[ld_wo],[ld_w1],[ld_w2],[]],
       2:[[ld_k],[ld_v],[ld_wo],[ld_w1],[ld_w2]],
       3:[[ld_k,ld_v],[ld_wo,ld_w1],[ld_w2],[],[]],4:[[],[],[],[],[]]}[4]
order=['wq']; names={ld_k:'k',ld_v:'v',ld_wo:'wo',ld_w1:'w1',ld_w2:'w2'}
q=['wq']*8
def issue(pt):
    for f in sched[pt]:
        f(); q.extend([names[f]]*8)
def iss(f):
    f(); q.extend([names[f]]*8)
def ack(tag=None):
    if tag: E(f"s_cmp_eq_u32 {sLAY}, 0"); E(f"s_cbranch_scc1 L_na_{tag}")
    if int(opts.get('ak',1)): E("s_waitcnt vmcnt(0)")
    ad=int(opts.get('ad'+(tag or '2'),opts.get('ad',0)))
    if ad: E(f"s_sleep {ad}")
    if tag: L(f"L_na_{tag}")
    E("s_barrier")
def wait_for(nm):
    last=max(i for i,x in enumerate(q) if x==nm); n=len(q)-1-last
    E(f"s_waitcnt vmcnt({n})")
    stamp2({'wq':11,'clr':12,'k':13,'v':14,'wo':15,'w1':16,'w2':17,'c1':18}[nm])
EXP=opts.get('exp','')
SC=int(opts.get('sc',0)); YB=int(opts.get('yb',1)) or SC in (5,7,8)
if SC in (1,2) and not EXP: iss(ld_k)
L("L_common2")
lin(S['pQP'],QP,[("s2",11)]); lin(S['pAP'],AP,[("s4",17),(sLO,14),("s5",11)]); lin(S['pAST'],AST,[("s4",13),(sLO,10),("s5",7)])
lin(S['pOP'],OP,[("s5",16),(sETA,11)]); E(f"s_xor_b32 {S['pOP']}, {S['pOP']}, 0x20000"); lin(S['pF1'],F1P,[("s6",11)])
E(f"s_lshr_b32 {sC0}, s7, 3"); E(f"s_and_b32 {sC1}, s7, 7"); lin(S['pF2'],F2P,[(sC1,16),(sC0,11)])
lin(S['pQST'],QST,[("s2",7)]); lin(S['pF1ST'],F1ST,[("s6",7)])
if STAMP:
    for i in range(20): E(f"s_mov_b32 s{STS+i}, 0")
stamp(0)
if EXP:
    E("s_cmp_ge_u32 s3, 4"); E("s_cbranch_scc1 L_fin")
    E("s_waitcnt vmcnt(0)"); stamp(1)
    for i,f in enumerate([ld_k,ld_v,ld_wo,ld_w1,ld_w2,ld_wq,ld_k]):
        f(); E("s_waitcnt vmcnt(0)"); stamp(2+i)
    E("s_branch L_fin")
    for nm in ('k','v','wo','w1','w2'): q.extend([nm]*8)
vEP=248
E("s_cmp_lt_u32 s3, 4"); E("s_cbranch_scc1 L_wt")
sec('wt'); L("L_wt")
E(f"s_lshl_b32 {sT}, {sW}, 6"); E(f"v_lshl_add_u32 v249, v{vG}, 4, {sT}")
E(f"s_lshl_b32 {sT}, {sW}, 9"); E(f"v_lshl_add_u32 v{vAQ}, v{vN}, 6, {sT}"); E(f"v_lshl_add_u32 v{vAQ}, v{vG}, 4, v{vAQ}"); E(f"v_lshl_add_u32 v{vAL}, v{vG}, 7, {sT}"); E(f"v_lshl_add_u32 v{vAL}, v{vN}, 4, v{vAL}")
E(f"s_mul_i32 {sT}, s6, 1792"); E(f"s_sub_u32 {sT}, {F1CS-F1P:#x}, {sT}")
setexec(0x01000100,0x01000100); E(f"v_add_u32 v{vAL}, {sT}, v249")
E(f"s_mul_i32 {sT}, s2, 1792"); E(f"s_sub_u32 {sT}, 0x80000, {sT}"); E(f"v_add_u32 v{vAQ}, {sT}, v249"); fullexec()
def flag_store(word):
    lin(sT,FLG+word*4,[("s2",7)])
    setexec(1,0); E(f"buffer_store_dword v{vEP}, off, {WS}, {sT} sc1"); fullexec()
M8=(0x00FF00FF,0x00FF00FF); M9=(0x01FF01FF,0x01FF01FF)
def bump(keys):
    for k in keys: E(f"s_add_u32 {S[k]}, {S[k]}, {LS:#x}")
def l0only(tag):
    E(f"s_cmp_lg_u32 {sLAY}, 0"); E(f"s_cbranch_scc1 L_skip_{tag}")
def bounce(nm,R,natural,nxt=None):
    t=RD+8
    E(f"s_mul_i32 {sT}, {sW}, {BSZ}"); E(f"s_add_u32 {sT}, {sT}, {BOUNCE}")
    E(f"v_add_u32 v{t}, {sT}, v{vL16}")
    E(f"v_lshrrev_b32 v{t+1}, 2, v{vN}"); E(f"v_lshl_add_u32 v{t+1}, v{vG}, {3 if natural else 2}, v{t+1}")
    E(f"v_lshlrev_b32 v{t+1}, 6, v{t+1}"); E(f"v_and_b32 v{t+2}, 3, v{vLANE}"); E(f"v_lshl_add_u32 v{t+1}, v{t+2}, 4, v{t+1}")
    E(f"v_add_u32 v{t+1}, {sT}, v{t+1}")
    wait_for(nm)
    if nm=='v' and YB: E("s_barrier")
    if nxt: iss(nxt)
    for i in range(8): E(f"ds_write_b128 v{t}, {vr(R+4*i,4)} offset:{i*1024}")
    E("s_waitcnt lgkmcnt(0)")
    for tt in range(2):
        for k in range(4):
            for u in range(2):
                E(f"ds_read_b64_tr_b16 {vr(R+16*tt+4*k+2*u,2)}, v{t+1} offset:{k*2048+u*(256 if natural else 1024)+8*tt}")
    E("s_waitcnt lgkmcnt(0)")
def bounce_k():
    t=RD+8
    E(f"s_mul_i32 {sT}, {sW}, {BSZ}"); E(f"s_add_u32 {sT}, {sT}, {BOUNCE}")
    E(f"v_mul_u32_u24 v{t}, 272, v{vG}"); E(f"v_lshl_add_u32 v{t}, v{vN}, 4, v{t}"); E(f"v_add_u32 v{t}, {sT}, v{t}")
    E(f"v_mul_u32_u24 v{t+1}, 272, v{vN}"); E(f"v_lshl_add_u32 v{t+1}, v{vG}, 4, v{t+1}"); E(f"v_add_u32 v{t+1}, {sT}, v{t+1}")
    VE=int(opts.get('ve',1))
    if VE: iss(ld_v)
    wait_for('k')
    if SC in (0,7,8) and not VE: iss(ld_v)
    for i in range(8): E(f"ds_write_b128 v{t}, {vr(RK+4*i,4)} offset:{i*1088}")
    E("s_waitcnt lgkmcnt(0)")
    for tt in range(2):
        for k in range(4): E(f"ds_read_b128 {vr(RK+16*tt+4*k,4)}, v{t+1} offset:{tt*16*272+k*64}")
    E("s_waitcnt lgkmcnt(0)")
def read_b(base):
    for k in range(4): E(f"ds_read_b128 {vr(RB+4*k,4)}, v{vL16} offset:{base+k*1024}")
def mm(R):
    for k in range(4):
        E(f"s_waitcnt lgkmcnt({3-k})" if not STAMP else "s_waitcnt lgkmcnt(0)")
        for tt in range(2): mfma(RD+4*tt,R+16*tt+4*k,RB+4*k,None if k==0 else RD+4*tt)
def pack_store(src,va,so,mask):
    for i in range(4): E(f"v_cvt_pk_bf16_f32 v{RD+8+i}, v{src+2*i}, v{src+2*i+1}")
    if mask is M9: E(f"s_mov_b32 exec_lo, {sC0}"); E(f"s_mov_b32 exec_hi, {sC0}")
    else: setexec(*mask)
    E(f"buffer_store_dwordx4 {vr(RD+8,4)}, v{va}, {WS}, {so} offen sc1"); fullexec(); q.append('st')
def gemm_phase(R,p,va,so,mask):
    read_b(OPB[p]); mm(R); nop(8); pack_store(RD,va,so,mask)
E(f"s_mov_b32 {sC0}, 0x01FF01FF"); E("s_waitcnt lgkmcnt(0)")
if SC==5: E("s_barrier"); iss(ld_k)
L("L_wloop")
l0only("wq"); bounce('wq',RWQ,False,ld_v if SC in (1,2,5) else ld_k); L("L_skip_wq")
E("s_barrier")
stamp(1)
gemm_phase(RWQ,0,vAQ,S['pQP'],M9)
stamp(2)
ack("q")
l0only("k"); bounce_k(); bounce('v',RV,False,ld_wo if SC!=1 else None); L("L_skip_k")
E("s_barrier")
stamp(3)
def at_bar(tag,f):
    l0only(tag); iss(f); L("L_skip_"+tag)
def l1clear():
    for i in range(4): E(f"v_mov_b32 v{240+i}, -1")
    E(f"s_lshl_b32 {sT}, s6, 2"); E(f"s_add_u32 {sT}, {sT}, {sW}"); E(f"s_mul_i32 {sT}, {sT}, 3072"); E(f"s_add_u32 {sT}, {sT}, {LS:#x}")
    E(f"v_mov_b32 v244, v{vL16}"); inact(sA1,244)
    for i in range(3): E(f"buffer_store_dwordx4 v[240:243], v244, {WS}, {sT} offen offset:{i*1024} sc1"); q.append('c1')
read_b(OPB[1])
if SC==1: at_bar("iwo",ld_wo)
if SC in (2,5,7,8): at_bar("iw1",ld_w1)
mm(RK);
E(f"s_mov_b32 {sT}, 0x3e0293ee")
nop(7)
d=RD; t=RD+8
E(f"v_max3_f32 v{t}, v{d}, v{d+1}, v{d+2}"); E(f"v_max3_f32 v{t+1}, v{d+3}, v{d+4}, v{d+5}")
E(f"v_max3_f32 v{t}, v{t}, v{d+6}, v{d+7}"); E(f"v_max_f32 v{t}, v{t}, v{t+1}")
def xrow(op,a,b):
    for sw in ("16","32"):
        E(f"v_mov_b32 v{b}, v{a}"); nop(2); E(f"v_permlane{sw}_swap_b32 v{a}, v{b}"); E(f"{op} v{a}, v{a}, v{b}")
xrow("v_max_f32",t,t+1)
E(f"v_mul_f32 v{t}, {sT}, v{t}")
for i in range(8): E(f"v_fma_f32 v{d+i}, v{d+i}, {sT}, -v{t}")
for i in range(8): E(f"v_exp_f32 v{d+i}, v{d+i}")
nop(1)
for i in range(4): E(f"v_cvt_pk_bf16_f32 v{t+4+i}, v{d+2*i}, v{d+2*i+1}")
E(f"s_lshl_b32 {sT}, {sW}, 10"); E(f"v_add_u32 v{t+2}, {sT}, v{vL16}")
E(f"ds_write_b128 v{t+2}, {vr(t+4,4)} offset:{PB}")
E(f"v_add_f32 v{d}, v{d}, v{d+1}"); E(f"v_add_f32 v{d+2}, v{d+2}, v{d+3}"); E(f"v_add_f32 v{d+4}, v{d+4}, v{d+5}"); E(f"v_add_f32 v{d+6}, v{d+6}, v{d+7}")
E(f"v_add_f32 v{d}, v{d}, v{d+2}"); E(f"v_add_f32 v{d+4}, v{d+4}, v{d+6}"); E(f"v_add_f32 v{t+1}, v{d}, v{d+4}")
xrow("v_add_f32",t+1,t+3)
E(f"s_lshl_b32 {sT}, {sW}, 3"); E(f"v_lshl_add_u32 v{t+2}, v{vN}, 5, {sT}")
setexec(0xFFFF,0); E(f"ds_write_b64 v{t+2}, {vr(t,2)} offset:{SMB}"); fullexec()
E("s_waitcnt lgkmcnt(0)")
E("s_barrier")
E(f"v_lshlrev_b32 v249, 5, v{vN}")
read_b(PB)
E(f"ds_read_b128 v[240:243], v249 offset:{SMB}"); E(f"ds_read_b128 v[244:247], v249 offset:{SMB+16}")
for k in range(4):
    E(f"s_waitcnt lgkmcnt({5-k})" if not STAMP else "s_waitcnt lgkmcnt(0)")
    for tt in range(2): mfma(RD+8*k+4*tt,RV+16*tt+4*k,RB+4*k,None)
E("s_waitcnt lgkmcnt(0)")
E("v_max3_f32 v248, v240, v242, v244"); E("v_max_f32 v248, v248, v246")
for i in range(4): E(f"v_sub_f32 v{240+2*i}, v{240+2*i}, v248")
for i in range(4): E(f"v_exp_f32 v{240+2*i}, v{240+2*i}")
nop(1)
E("v_mul_f32 v249, v240, v241")
for i in range(1,4): E(f"v_fmac_f32 v249, v{240+2*i}, v{241+2*i}")
for i in range(8): E(f"v_mul_f32 v{RD+i}, v240, v{RD+i}")
for k in range(1,4):
    for i in range(8): E(f"v_fmac_f32 v{RD+i}, v{240+2*k}, v{RD+8*k+i}")
pack_store(RD,vAQ,S['pAP'],M8)
E(f"s_lshl_b32 {sT}, {sW}, 30"); E(f"v_lshl_add_u32 v240, v{vN}, 3, {sT}")
setexec(0xFF,0)
E(f"buffer_store_dwordx2 v[248:249], v240, {WS}, {S['pAST']} offen sc1"); fullexec(); q.append('st')
stamp(4)
ack("a")
l0only("wo")
JIT=int(opts.get('jit',0)); BOTH=int(opts.get('both',0))
if BOTH:
    if BOTH==2: l1clear()
    iss(ld_w1); iss(ld_w2)
    if BOTH==1: l1clear()
    bounce('wo',RWO,True); bounce('w1',RW1,False)
elif JIT:
    if 'c1e' in opts: l1clear()
    bounce('wo',RWO,True,ld_w1)
    if JIT==2: wait_for('w1'); iss(ld_w2)
elif SC==0: bounce('wo',RWO,True,ld_w1); bounce('w1',RW1,False,None if 'w2d' in opts else ld_w2)
elif SC in (7,8): bounce('wo',RWO,True); bounce('w1',RW1,False,ld_w2 if SC==7 else None)
else:
    if SC==5: iss(ld_w2)
    l1clear(); bounce('wo',RWO,True)
if SC in (2,5): bounce('w1',RW1,False)
L("L_skip_wo")
E("s_barrier")
stamp(5)
if SC==1: at_bar("iw1",ld_w1)
if SC in (2,8) or opts.get('w2d')=='1': at_bar("iw2",ld_w2)
gemm_phase(RWO,2,vAL,S['pOP'],M8)
ack("o")
l0only("w1")
if opts.get('w2d')=='2': iss(ld_w2)
if SC in (0,7,8) and BOTH in (0,3) and 'c1e' not in opts: l1clear()
if JIT:
    if JIT==3: E("s_barrier")
    bounce('w1',RW1,False,ld_w2 if JIT!=2 else None); wait_for('c1')
elif SC==1: bounce('w1',RW1,False)
else: bounce('w2',RW2,False); E("s_waitcnt vmcnt(0)"); stamp2(18)
L("L_skip_w1")
E("s_barrier")
stamp(6)
if SC==1: at_bar("iw2",ld_w2)
E(f"s_cmp_eq_u32 {sA1}, 0"); E("s_cbranch_scc1 L_nof1")
gemm_phase(RW1,3,vAL,S['pF1'],M9); q.pop()
L("L_nof1")
if SC==1 or JIT: ack("f"); l0only("w2"); bounce('w2',RW2,False); L("L_skip_w2")
else: ack()
E("s_barrier")
stamp(7)
E(f"s_cmp_eq_u32 {sA2}, 0"); E("s_cbranch_scc1 L_nof2")
gemm_phase(RW2,4,vAL,S['pF2'],M8)
L("L_nof2")
stamp(8)
ack()
bump(['pQP','pAP','pAST','pOP','pF1','pF2']); E(f"s_mov_b32 {sC0}, 0x00FF00FF")
E(f"s_add_u32 {sLAY}, {sLAY}, 1"); E(f"s_cmp_lt_u32 {sLAY}, 2"); E("s_cbranch_scc1 L_wloop")
E("s_branch L_fin")
sec('cm')
G=0; X=64; MP=72; A1=80; AG=88; D0=92; D1=96; D2=100; D3=104; T=108; AW=160
vG1,vCS,vST,vG3,vAST,vLW,vSTa,vOW,vONE=140,141,142,143,144,145,146,147,148
E(f"v_and_b32 v{T}, 7, v{vN}"); E(f"v_lshrrev_b32 v{T+1}, 3, v{vN}")
E(f"v_lshlrev_b32 v{vOW}, 11, v{T}"); E(f"v_lshl_add_u32 v{vOW}, v{vG}, 3, v{vOW}")
lin(sT,0,[(sLO,8),(sW,6)]); E(f"v_add_u32 v{vOW}, {sT}, v{vOW}")
E(f"buffer_load_dwordx2 v[{T+8}:{T+9}], v{vOW}, {SX}, 0 offen"); E(f"buffer_load_dwordx2 v[{T+10}:{T+11}], v{vOW}, {SX}, 0 offen offset:32")
for i in range(4): E(f"v_mov_b32 v{G+i}, -1")
E(f"s_cmp_lg_u32 {sW}, 1"); E("s_cbranch_scc1 L_cl2")
for i in range(2): E(f"buffer_store_dwordx4 {vr(G,4)}, v{vL16}, {WS}, {S['pQP']} offen offset:{i*1024} sc1")
E(f"v_lshlrev_b32 v{T+2}, 4, v{vN}"); lin(sT,QP+0x80000,[("s2",8)]); E(f"v_add_u32 v{T+3}, {sT}, v{T+2}")
setexec(0xFF0000,0); E(f"v_add_u32 v{T+3}, {S['pQST']}, v{T+2}")
setexec(0,0xFF); E(f"v_add_u32 v{T+3}, {S['pAST']}, v{T+2}")
setexec(0xFFFFFF,0xFF); E(f"buffer_store_dwordx4 {vr(G,4)}, v{T+3}, {WS}, 0 offen sc1"); fullexec()
L("L_cl2")
E(f"s_mov_b32 {sT}, {S['pAP']}")
E(f"s_cmp_eq_u32 {sW}, 0"); E(f"s_cselect_b32 {sT}, {S['pOP']}, {sT}")
E(f"s_cmp_eq_u32 {sW}, 2"); E(f"s_cselect_b32 {sT}, {S['pF1']}, {sT}")
E(f"s_cmp_eq_u32 {sW}, 3"); E(f"s_cselect_b32 {sT}, {S['pF2']}, {sT}")
for i in range(2): E(f"buffer_store_dwordx4 {vr(G,4)}, v{vL16}, {WS}, {sT} offen offset:{i*1024} sc1")
E(f"s_bitcmp1_b32 {sW}, 0"); E("s_cbranch_scc1 L_nsm")
lin(sT,F1CS,[("s6",8)])
E(f"s_cmp_eq_u32 {sW}, 0"); E(f"s_cselect_b32 {sT}, {S['pF1ST']}, {sT}"); E(f"s_cselect_b32 exec_lo, 0xff, -1"); E("s_and_b32 exec_lo, exec_lo, 0xffff"); E("s_mov_b32 exec_hi, 0")
E(f"buffer_store_dwordx4 {vr(G,4)}, v{vL16}, {WS}, {sT} offen sc1")
L("L_nsm"); fullexec(); stamp2(12)
if SC==5: E("s_barrier")
E(f"v_lshlrev_b32 v{vSTa}, 3, v{T}"); setexec(0xFFFFFFFF,0); E(f"v_add_u32 v{vSTa}, 4, v{vSTa}")
fullexec()
lin(S['gF2'],(F2P-LS)&0xffffffff,[(sLO,16)]); lin(S['gOP'],OP,[(sLO,16)]); lin(S['gQP'],QP,[("s4",17),(sLO,6)]); lin(S['gQCS'],QP+8*65536,[("s4",14)])
lin(S['gQST'],QST,[(sHI,10),(sLO,3)]); lin(S['gAP'],AP,[("s4",17),(sLO,6)]); lin(S['gAST'],AST,[("s4",13),(sLO,3)])
E(f"s_lshr_b32 {sC0}, s7, 3")
lin(S['gF1'],F1P,[(sC0,14)]); lin(S['gF1CS'],F1CS,[(sC0,11)]); lin(S['gF1ST'],F1ST,[(sC0,10)])
E(f"v_and_b32 v{T+3}, 2, v{vG}"); E(f"v_add_u32 v{T+3}, v{T+3}, v{T+1}")
E(f"v_and_b32 v{T+4}, 1, v{vG}")
E(f"s_lshl_b32 {sT}, {sW}, 9"); E(f"v_lshl_add_u32 v{vG1}, v{T+3}, 11, {sT}"); E(f"v_lshl_add_u32 v{vG1}, v{T+4}, 7, v{vG1}"); E(f"v_lshl_add_u32 v{vG1}, v{T}, 4, v{vG1}")
E(f"s_lshl_b32 {sT}, {sW}, 6"); E(f"v_lshl_add_u32 v{vCS}, v{T+3}, 8, {sT}"); E(f"v_lshl_add_u32 v{vCS}, v{T+4}, 4, v{vCS}")
E(f"v_lshl_add_u32 v{vST}, v{vG}, 1, v{T+1}"); E(f"v_lshlrev_b32 v{vST}, 7, v{vST}")
E(f"v_lshl_add_u32 v149, v{T}, 3, v{vST}")
E(f"s_lshl_b32 {sT}, {sW}, 12"); E(f"v_lshl_add_u32 v{vG3}, v{vG}, 9, {sT}"); E(f"v_lshl_add_u32 v{vG3}, v{vN}, 4, v{vG3}")
E(f"s_lshl_b32 {sT}, {sW}, 11"); E(f"v_lshl_add_u32 v{vAST}, v{T+1}, 10, {sT}"); E(f"v_lshl_add_u32 v{vAST}, v{vG}, 8, v{vAST}")
E(f"s_lshl_b32 {sT}, {sW}, 15"); E(f"v_lshl_add_u32 v151, v{vG}, 12, {sT}"); E(f"v_lshrrev_b32 v152, 2, v{vN}"); E("v_lshl_add_u32 v151, v152, 9, v151")
E(f"v_and_b32 v152, 3, v{vN}"); E("v_lshl_add_u32 v151, v152, 4, v151"); E("v_add_u32 v152, 0x4000, v151")
E(f"s_lshl_b32 {sT}, {sW}, 5"); E(f"v_lshl_add_u32 v{vLW}, v{vG}, 3, {sT}"); E(f"v_lshl_add_u32 v{vLW}, v{vN}, 8, v{vLW}")
E(f"s_lshl_b32 {sT}, {sW}, 10"); E(f"v_add_u32 v150, {sT}, v{vL16}")
lin(sC0,0,[("s4",13),(sW,11)]); E(f"v_lshl_add_u32 v191, v{vN}, 7, {sC0}")
E(f"s_lshl_b32 {sC0}, {sHI}, 10"); setexec(0xFF0000,0); E(f"v_lshl_add_u32 v191, v{vN}, 7, {sC0}"); fullexec()
E(f"v_mov_b32 v{vONE}, 1.0"); lin(sC0,4,[(sW,13)]); E(f"v_lshl_add_u32 v188, v{vLANE}, 7, {sC0}")
E(f"v_and_b32 v{T+5}, 1, v{vN}"); E(f"v_lshlrev_b32 v{T+5}, 4, v{T+5}"); E(f"v_mov_b32 v{T+6}, 0xffff"); E(f"v_lshlrev_b32 v{T+6}, v{T+5}, v{T+6}")
E(f"v_lshrrev_b32 v{T+5}, 1, v{vN}")
for i in range(8):
    E(f"v_cmp_eq_u32 vcc, {i}, v{T+5}"); nop(2); E(f"v_cndmask_b32 v{MP+i}, 0, v{T+6}, vcc")
for i in range(8): E(f"v_and_b32 v{A1+i}, 0x3f803f80, v{MP+i}")
E(f"v_cmp_eq_u32 vcc, 0, v{T+4}"); nop(2)
for i in range(4): E(f"v_cndmask_b32 v{AG+i}, v{A1+4+i}, v{A1+i}, vcc")
stamp2(13)
E("s_waitcnt vmcnt(5)"); E(f"s_cmp_eq_u32 {sW}, 1"); E("s_cbranch_scc1 L_x0p")
E("s_waitcnt vmcnt(3)"); E(f"s_cmp_lg_u32 {sW}, 3"); E("s_cbranch_scc1 L_x0p")
E("s_waitcnt vmcnt(2)"); L("L_x0p"); stamp2(14); E("s_waitcnt lgkmcnt(0)"); E("s_add_u32 s0, s0, 1"); E(f"v_mov_b32 v{vEP}, s0")
uid=[0]
def gld(dst,va,so,off,sel):
    if sel:
        uid[0]+=1
        E(f"v_max3_u32 v190, v{dst}, v{dst+1}, v{dst+2}"); E(f"v_max_u32 v190, v190, v{dst+3}"); E("v_cmp_eq_u32 vcc, -1, v190")
        E("s_mov_b64 exec, vcc"); E(f"s_cbranch_execz L_sl{uid[0]}")
    E(f"buffer_load_dwordx4 {vr(dst,4)}, v{va}, {WS}, {so} offen offset:{off} sc1")
    if sel: L(f"L_sl{uid[0]}"); fullexec()
def poll_end(tag,regs,loads):
    E(f"v_cmp_u_f32 {sP}, v{regs[0]}, v{regs[1]}")
    if len(regs)>2:
        E(f"v_cmp_u_f32 vcc, v{regs[2]}, v{regs[3]}"); E(f"s_or_b64 {sP}, {sP}, vcc")
    E(f"s_cmp_lg_u64 {sP}, 0"); E(f"s_cbranch_scc1 L_rt_{tag}")
    old=sec('rt'); L(f"L_rt_{tag}")
    E(f"s_sub_u32 {sBUD}, {sBUD}, 1"); E(f"s_cmp_lt_i32 {sBUD}, 0"); E(f"s_cbranch_scc1 L_pd_{tag}")
    if int(opts.get('slp',0)): E(f"s_sleep {opts['slp']}")
    loads(True); E("s_waitcnt vmcnt(0)"); E(f"s_branch L_pm_{tag}"); sec(old)
    L(f"L_pd_{tag}")
def ror8(r,n):
    for i in range(n): E(f"v_add_f32_dpp v{r+i}, v{r+i}, v{r+i} row_ror:8 row_mask:0xf bank_mask:0xf")
def g1(tag,key,ng):
    def loads(sel):
        E(f"s_mov_b32 {sT}, {S[key]}")
        for i in range(ng):
            for h in range(2): gld(G+8*i+4*h,vG1,sT,h*256,sel)
            if i<ng-1: E(f"s_add_u32 {sT}, {sT}, 8192")
    loads(False)
    if tag=="o" and JIT==3: l0only("y2"); E("s_barrier"); L("L_skip_y2")
    L(f"L_pm_{tag}")
    for i in range(ng):
        for h in range(2):
            E(f"s_waitcnt vmcnt({2*ng-1-2*i-h})"); mfma(D0+4*h,AG,G+8*i+4*h,None if i==0 else D0+4*h)
    nop(8); poll_end(tag,[D0,D1],loads); ror8(D0,8)
    for i in range(8): E(f"v_add_f32 v{D0+i}, v{D0+i}, v{X+i}")
    for i in range(4): E(f"v_cvt_pk_bf16_f32 v{T+8+i}, v{D0+2*i}, v{D0+2*i+1}")
def x_out(p):
    for i in range(4):
        E(f"v_lshlrev_b32 v{X+2*i}, 16, v{T+8+i}"); E(f"v_and_b32 v{X+2*i+1}, 0xffff0000, v{T+8+i}")
    setexec(0xFF00FF00,0xFF00FF00)
    for i in range(4): E(f"v_mov_b32 v{T+8+i}, 0x3f803f80")
    fullexec()
    E(f"ds_write_b128 v150, {vr(T+8,4)} offset:{OPB[p]}"); E("s_waitcnt lgkmcnt(0)")
def gram(tag,p,key):
    for k in range(4): E(f"ds_read_b128 {vr(G+4*k,4)}, v{vL16} offset:{OPB[p]+k*1024}")
    E("s_waitcnt lgkmcnt(0)")
    for k in range(4): mfma(D0,G+4*k,G+4*k,None if k==0 else D0)
    nop(8)
    for i in range(1,4):
        setexec((1<<i)|(1<<(20+i)),0); E(f"v_mov_b32 v{D0}, v{D0+i}")
    setexec(0x00F0000F,0xFF); E(f"buffer_store_dword v{D0}, v{vSTa}, {WS}, {S[key]} offen sc1"); fullexec()
def ln_stats(r):
    ror8(D2,1); ror8(D3,1)
    E(f"s_mov_b32 {sT}, 0x3a800000")
    E(f"v_mul_f32 v{D2}, {sT}, v{D2}"); E(f"v_mul_f32 v{D3}, {sT}, v{D3}")
    E(f"v_fma_f32 v{D3}, -v{D2}, v{D2}, v{D3}"); E(f"v_max_f32 v{D3}, 0, v{D3}"); E(f"v_add_f32 v{D3}, 0x3727c5ac, v{D3}")
    E(f"v_rsq_f32 v{D3}, v{D3}")
def stat_mfma(r):
    E(f"v_mfma_f32_16x16x4_f32 {vr(D2,4)}, v{vONE}, v{r}, 0"); E(f"v_mfma_f32_16x16x4_f32 {vr(D3,4)}, v{vONE}, v{r+1}, 0")
sec('g1f')
E(f"s_cmp_lt_u32 {sLAY}, 2"); E("s_cbranch_scc1 L_nf"); E(f"s_cmp_lg_u32 {sHI}, {sW}"); E("s_cbranch_scc1 L_fin"); L("L_nf")
g1("f2",'gF2',7)
E(f"s_cmp_lt_u32 {sLAY}, 2"); E("s_cbranch_scc1 L_x0")
setexec(*M8)
E(f"buffer_store_dwordx2 v[{T+8}:{T+9}], v{vOW}, {SOUT}, 0 offen"); E(f"buffer_store_dwordx2 v[{T+10}:{T+11}], v{vOW}, {SOUT}, 0 offen offset:32")
fullexec()
sec('cm'); L("L_x0")
x_out(0)
stamp(1)
l0only("fs"); E(f"s_cmp_lg_u32 {sW}, 1"); E("s_cbranch_scc1 L_skip_fs")
E("s_waitcnt vmcnt(0)"); flag_store(0); stamp2(11); L("L_skip_fs")
E("s_barrier")
E(f"s_cmp_lg_u32 {sW}, 0"); E("s_cbranch_scc1 L_ng0"); gram("q",0,'pQST'); L("L_ng0")
stamp(7)
def flagpoll(tag,lo,hi,T=T,pre=False):
    E(f"s_mov_b32 {sT}, {FLG:#x}"); setexec(lo,hi)
    if pre: E(f"s_branch L_fc{tag}")
    L(f"L_fl{tag}")
    E(f"buffer_load_dword v{T+1}, v{T}, {WS}, {sT} offen sc1"); L(f"L_fc{tag}"); E("s_waitcnt vmcnt(0)")
    E(f"v_cmp_ne_u32 {sP}, v{vEP}, v{T+1}"); E(f"s_cmp_eq_u64 {sP}, 0"); E(f"s_cbranch_scc1 L_fd{tag}")
    E(f"s_sleep {opts.get('fs','2')}")
    E(f"s_sub_u32 {sBUD}, {sBUD}, 1"); E(f"s_cmp_gt_i32 {sBUD}, 0"); E(f"s_cbranch_scc1 L_fl{tag}")
    L(f"L_fd{tag}"); fullexec()
EP=int(opts.get('ep',0))
if EP:
    l0only("fpre"); E(f"s_mov_b32 {sT}, {FLG:#x}"); setexec(0xFFFFFF,0); E(f"buffer_load_dword v192, v191, {WS}, {sT} offen sc1"); fullexec(); L("L_skip_fpre")
E("s_barrier")
l0only("flag")
flagpoll("g",0xFFFFFF,0,191,EP)
L("L_skip_flag")
def l0delay(tag):
    if int(opts.get('l0d',0)): l0only("dl"+tag); E(f"s_sleep {opts['l0d']}"); L("L_skip_dl"+tag)
stamp(2)
CQ=176; CF=180
def ld_q(sel):
    l0only(f"cq0{sel}")
    for p in range(2):
        for i in range(2): gld(G+16+8*p+4*i,vG3,S['gQCS'],p*2048+i*256,sel)
    L(f"L_skip_cq0{sel}")
    E(f"buffer_load_dwordx2 v[{T}:{T+1}], v{vST}, {WS}, {S['gQST']} offen sc1")
    for p in range(2):
        for i in range(2): gld(G+8*p+4*i,151+p,S['gQP'],i*2048,sel)
ld_q(False)
if YB: l0only("y"); E("s_barrier"); L("L_skip_y")
L("L_pm_q")
E("s_waitcnt vmcnt(4)"); stat_mfma(T)
l0only("cq")
for c in range(4): mfma(CQ,A1+4*(c//2),G+16+4*c,None if c==0 else CQ)
L("L_skip_cq")
nop(8); ln_stats(T)
E(f"v_add_f32 v{T+2}, v{D3+1}, v{D2+1}")
for i in range(4): E(f"v_mul_f32 v{D0+i}, -v{D2}, v{CQ+i}")
nop(1)
for c in range(4):
    E(f"s_waitcnt vmcnt({3-c})"); mfma(D0,A1+4*(c//2),G+4*c,D0)
nop(8)
for i in range(4): E(f"v_mul_f32 v{D0+i}, v{D3}, v{D0+i}")
poll_end("q",[D0,T+2],ld_q)
def small_out(p):
    for i in range(2): E(f"v_cvt_pk_bf16_f32 v{T+8+i}, v{D0+2*i}, v{D0+2*i+1}")
    E(f"ds_write_b64 v{vLW}, {vr(T+8,2)} offset:{OPB[p]}"); E("s_waitcnt lgkmcnt(0)")
small_out(1)
stamp(3)
E("s_barrier")
l0only("c1")
E(f"s_cmp_lg_u32 {sW}, 1"); E("s_cbranch_scc1 L_skip_c1"); flag_store(1)
L("L_skip_c1")
E("s_barrier")
E("s_barrier")
l0delay("a")
stamp(8)
def ld_a(sel):
    l0only(f"c3{sel}"); E(f"s_mov_b32 {sT}, {FLG:#x}"); E(f"buffer_load_dword v189, v188, {WS}, {sT} offen sc1"); L(f"L_skip_c3{sel}")
    for i in range(2): E(f"buffer_load_dwordx2 {vr(T+2*i,2)}, v{vAST}, {WS}, {S['gAST']} offen offset:{i*128} sc1")
    for p in range(2):
        for i in range(2): gld(G+8*p+4*i,151+p,S['gAP'],i*2048,sel)
ld_a(False); L("L_pm_a")
E("s_waitcnt vmcnt(4)")
E(f"v_max_f32 v{T+4}, v{T}, v{T+2}"); xrow("v_max_f32",T+4,T+5)
E(f"v_sub_f32 v{T}, v{T}, v{T+4}"); E(f"v_sub_f32 v{T+2}, v{T+2}, v{T+4}"); E(f"v_exp_f32 v{T}, v{T}"); E(f"v_exp_f32 v{T+2}, v{T+2}"); nop(1)
E(f"v_cvt_pk_bf16_f32 v{T}, v{T}, v{T}"); E(f"v_cvt_pk_bf16_f32 v{T+2}, v{T+2}, v{T+2}")
for p in range(2):
    for i in range(2):
        for r in range(4): E(f"v_and_b32 v{AW+8*p+4*i+r}, v{MP+4*p+r}, v{T+2*i}")
E(f"v_and_b32 v{T}, 0xffff0000, v{T}"); E(f"v_and_b32 v{T+2}, 0xffff0000, v{T+2}")
for c in range(4):
    E(f"s_waitcnt vmcnt({3-c})"); mfma(D0,AW+4*c,G+4*c,None if c==0 else D0)
E(f"v_mul_f32 v{T+4}, v{T}, v{T+1}"); E(f"v_fmac_f32 v{T+4}, v{T+2}, v{T+3}"); xrow("v_add_f32",T+4,T+5)
E(f"v_rcp_f32 v{T+4}, v{T+4}"); nop(1)
E(f"v_readlane_b32 {sC0}, v{T+4}, 0"); E(f"v_readlane_b32 {sC1}, v{T+4}, 8"); nop(2)
E(f"v_mov_b32 v{T+4}, {sC1}"); setexec(0xFFFFFFFF,0); E(f"v_mov_b32 v{T+4}, {sC0}"); fullexec()
for i in range(4): E(f"v_mul_f32 v{D0+i}, v{T+4}, v{D0+i}")
poll_end("a",[D0,D0+1],ld_a)
small_out(2)
stamp(4)
E("s_barrier")
l0only("c2"); flagpoll("a",0xFFFFFFFF,0xFFFFFFFF,188,True); L("L_skip_c2")
E("s_barrier")
E(f"s_add_u32 {sT}, s2, {sW}"); E(f"s_add_u32 {sT}, {sT}, {sLAY}"); E(f"s_cmp_lg_u32 {sT}, 0"); E("s_cbranch_scc1 L_nep")
E(f"s_mov_b32 {sT}, {EPO:#x}"); setexec(1,0); E(f"buffer_store_dword v{vEP}, off, {WS}, {sT} sc1"); fullexec()
L("L_nep")
l0delay("o")
g1("o",'gOP',8)
x_out(3)
stamp(5)
E("s_barrier")
E(f"s_cmp_lg_u32 {sW}, 0"); E("s_cbranch_scc1 L_ng1"); E(f"s_cmp_eq_u32 {sA1}, 0"); E("s_cbranch_scc1 L_ng1"); gram("f",3,'pF1ST'); L("L_ng1")
E("s_barrier")
if SC==1 or JIT: l0delay("f")
E(f"s_cmp_eq_u32 {sA2}, 0"); E("s_cbranch_scc1 L_nog2")
E0,E1=AW,AW+4
def ld_h(sel):
    l0only(f"cf0{sel}")
    for i in range(2):
        for h in range(2): gld(G+16+8*i+4*h,vCS,S['gF1CS'],i*1024+h*32,sel)
    L(f"L_skip_cf0{sel}")
    E(f"buffer_load_dwordx2 v[{T}:{T+1}], v149, {WS}, {S['gF1ST']} offen sc1")
    E(f"s_add_u32 {sT}, {S['gF1']}, 8192")
    for i in range(2):
        for h in range(2): gld(G+8*i+4*h,vG1,S['gF1'] if i==0 else sT,h*256,sel)
ld_h(False); L("L_pm_h")
E("s_waitcnt vmcnt(4)"); stat_mfma(T)
l0only("cf")
for c in range(4): mfma(CF+4*(c%2),AG,G+16+4*c,None if c<2 else CF+4*(c%2))
L("L_skip_cf")
nop(8); ln_stats(T)
E(f"v_add_f32 v{T+2}, v{D3+1}, v{D2+1}")
for i in range(8): E(f"v_mul_f32 v{D0+i}, -v{D2}, v{CF+i}")
nop(1)
for c in range(4):
    E(f"s_waitcnt vmcnt({3-c})"); mfma(D0+4*(c%2),AG,G+4*c,D0+4*(c%2))
nop(8)
poll_end("h",[D0,D1,T+2,T+2],ld_h)
ror8(D0,8)
E(f"s_mov_b32 {sT}, 0xbfb8aa3b")
for i in range(8): E(f"v_mul_f32 v{D0+i}, v{D3}, v{D0+i}")
for i in range(8): E(f"v_mul_f32 v{E0+i}, {sT}, v{D0+i}")
for i in range(8): E(f"v_exp_f32 v{E0+i}, v{E0+i}")
for i in range(8): E(f"v_add_f32 v{E0+i}, 1.0, v{E0+i}")
for i in range(8): E(f"v_rcp_f32 v{E0+i}, v{E0+i}")
for i in range(8): E(f"v_mul_f32 v{D0+i}, v{E0+i}, v{D0+i}")
for i in range(4): E(f"v_cvt_pk_bf16_f32 v{T+8+i}, v{D0+2*i}, v{D0+2*i+1}")
E(f"ds_write_b128 v150, {vr(T+8,4)} offset:{OPB[4]}"); E("s_waitcnt lgkmcnt(0)")
L("L_nog2")
stamp(6)
E("s_barrier")
E("s_barrier")
bump(['pQST','pF1ST','gF2','gOP','gQP','gQCS','gQST','gAP','gAST','gF1','gF1CS','gF1ST'])
E(f"s_add_u32 {sLAY}, {sLAY}, 1")
sec('fin'); L("L_fin")
if STAMP:
    E(f"s_mov_b32 {sLAY}, 1"); stamp(9)
    E(f"s_mov_b32 s{STS+9}, {sBUD}")
    E("s_lshl_b32 s4, s2, 3"); E("s_add_u32 s4, s4, s3"); E("s_lshl_b32 s4, s4, 7"); E(f"s_add_u32 s4, s4, {STB_WS:#x}")
    E("v_mov_b32 v1, 0"); setexec(1,0)
    for i in range(20):
        E(f"v_mov_b32 v2, s{STS+i}"); E(f"buffer_store_dword v2, v1, {WS}, s4 offen offset:{4*i}"); nop(2)
    E("s_waitcnt vmcnt(0)")
L("L_end")
E("s_endpgm")
for k in ('cm','g1f','fin','wt','rt'): out.extend(secs[k])
out.append("L_codeend:")
out.append(""".section .rodata,"a"
.p2align 6
.amdhsa_kernel %s_kernel
  .amdhsa_next_free_vgpr 256
  .amdhsa_next_free_sgpr 102
  .amdhsa_accum_offset 256
  .amdhsa_group_segment_fixed_size 0
  .amdhsa_kernarg_size 88
  .amdhsa_user_sgpr_count 2
  .amdhsa_user_sgpr_kernarg_segment_ptr 1
  .amdhsa_system_sgpr_workgroup_id_x 1
.end_amdhsa_kernel"""%NAME)
open(sys.argv[1],"w").write("\n".join(out)+"\n")
```

```python
import sys
NAME="interleave_layers__sliding_block_cached__dense_activation_silu__decode"
opts=dict(a.split('=') for a in sys.argv[2:])
STAMP=int(opts.get('stamp',0))
STAGE=int(opts.get('stage',0))
NT=opts.get('nt','0')=='1'
out=[]
secs={k:[] for k in ('wt','cm','g1f','rt','fin')}; cur=[out]
def sec(k):
    old=cur[0]; cur[0]=secs[k] if isinstance(k,str) else k; return old
def E(s): cur[0].append("    "+s)
def L(s): cur[0].append(s+":")
def C(s): out.append("    ; "+s)
def nop(n): E(f"s_nop {n-1}")
LS=0x300000
AP,OP,F1P,F2P,QST,F1ST,AST,QP,F1CS=0,0x80000,0x100000,0x180000,0x200000,0x208000,0x210000,0x218000,0x2A8000
FLG,EPO=0x2C0000,0x2D0000
STB_WS=0x600000
WS_REC=0x800000
OPB=[0,4096,8192,12288,16384]; PB=20480; SMB=24576; BOUNCE=25600; BSZ=8704
LDS=61440
WS="s[8:11]"; SWQ="s[12:15]"; SK="s[16:19]"; SV="s[20:23]"; SWO="s[24:27]"; SW1="s[28:31]"; SW2="s[32:35]"
SX="s[36:39]"; SOUT="s[40:43]"; SDBG="s[44:47]"
sW,sLO,sHI,sLAY,sBUD,sT,sT2,sETA="s48","s49","s50","s51","s52","s53","s54","s55"
sA1,sA2="s56","s57"
offs=["pQP","pAP","pAST","pOP","pF1","pF2","pQST","pF1ST","gF2","gOP","gQP","gQCS","gQST","gAP","gAST","gF1","gF1CS","gF1ST"]
S={n:f"s{58+i}" for i,n in enumerate(offs)}
sC0,sC1="s76","s77"; sP="s[78:79]"; sP0,sP1="s78","s79"
STS=80
nst=[0]
def stamp(i):
    if STAMP:
        E("s_memrealtime s[100:101]"); E("s_waitcnt lgkmcnt(0)")
        E(f"s_cmp_eq_u32 {sLAY}, 0"); E(f"s_cselect_b32 s{STS+i}, s100, s{STS+i}");
        if STAMP!=2 or i==9: E(f"s_cselect_b32 s{STS+10+i}, s{STS+10+i}, s100")
def stamp2(i):
    if STAMP==2: E("s_memrealtime s[100:101]"); E("s_waitcnt lgkmcnt(0)"); E(f"s_mov_b32 s{STS+i}, s100")
def setexec(lo,hi):
    E(f"s_mov_b32 exec_lo, {lo:#x}"); E(f"s_mov_b32 exec_hi, {hi:#x}")
def fullexec(): E("s_mov_b64 exec, -1")
def vr(a,n): return f"v[{a}:{a+n-1}]"
def mfma(d,a,b,c): E(f"v_mfma_f32_16x16x32_bf16 {vr(d,4)}, {vr(a,4)}, {vr(b,4)}, {('0' if c is None else vr(c,4))}")
def srd(s,ptr,n):
    b=int(s[2:s.index(':')])
    E(f"s_mov_b32 s{b}, s{ptr}"); E(f"s_and_b32 s{b+1}, s{ptr+1}, 0xffff"); E(f"s_mov_b32 s{b+2}, {n:#x}"); E(f"s_mov_b32 s{b+3}, 0x20000")
vL16,vAQ,vAL,vLANE,vN,vG=255,254,253,252,251,250
hdr=open(f"cdna_kernels/{NAME}.s.ref").read().split("; Override")[0]
out.append(hdr.rstrip())
out.append(f"; @launch grid=(256,1,1) block=(512,1,1) lds={LDS}")
out.append('.amdgcn_target "amdgcn-amd-amdhsa--gfx950"\n.text\n.globl %s_kernel\n.p2align 8\n.type %s_kernel,@function\n%s_kernel:'%(NAME,NAME,NAME))
E("s_cmp_ge_u32 s2, 256"); E("s_cbranch_scc1 L_end")
if opts.get('perm'): E("s_lshr_b32 s3, s2, 3"); E("s_and_b32 s2, s2, 7"); E("s_lshl_b32 s2, s2, 5"); E("s_or_b32 s2, s2, s3")
E("s_load_dwordx16 s[80:95], s[0:1], 0")
E("s_load_dwordx4 s[96:99], s[0:1], 64")
E("s_load_dwordx2 s[100:101], s[0:1], 80")
PF=int(opts.get('pf',1))
if PF:
    E("s_getpc_b64 s[4:5]"); L("L_pc")
    E("v_lshlrev_b32 v2, 6, v0"); E("v_min_u32 v2, L_codeend-L_pc-4, v2")
    E("v_mov_b32 v3, s5"); E("v_add_co_u32 v2, vcc, s4, v2"); E("v_addc_co_u32 v3, vcc, 0, v3, vcc")
    E("global_load_dword v247, v[2:3], off")
E("v_lshrrev_b32 v1, 6, v0"); E(f"v_and_b32 v{vLANE}, 63, v0")
E(f"s_and_b32 {sLO}, s2, 7"); E(f"v_readfirstlane_b32 s3, v1"); E(f"s_lshr_b32 {sHI}, s2, 3")
E(f"s_and_b32 {sW}, s3, 3")
E(f"v_lshlrev_b32 v{vL16}, 4, v{vLANE}"); E(f"v_and_b32 v{vN}, 15, v{vLANE}"); E(f"v_lshrrev_b32 v{vG}, 4, v{vLANE}")
E(f"s_lshr_b32 s4, {sHI}, 3")
E(f"s_and_b32 s5, {sHI}, 7")
E(f"s_lshl_b32 {sETA}, s4, 3"); E(f"s_add_u32 {sETA}, {sETA}, {sLO}")
E(f"s_add_u32 {sT}, {sHI}, 1"); E(f"s_and_b32 {sT}, {sT}, 3"); E(f"s_and_b32 {sT2}, {sHI}, 28"); E(f"s_add_u32 s6, {sT}, {sT2}")
E("s_cmp_lt_u32 s6, 28"); E(f"s_cselect_b32 {sA1}, 1, 0"); E("s_lshl_b32 s6, s6, 3"); E(f"s_add_u32 s6, s6, {sLO}")
E(f"s_xor_b32 {sT}, {sT}, 2"); E(f"s_add_u32 {sT2}, {sT2}, 4"); E(f"s_and_b32 {sT2}, {sT2}, 28"); E(f"s_add_u32 {sT}, {sT}, {sT2}")
E(f"s_mul_i32 s7, {sLO}, 28"); E(f"s_add_u32 s7, s7, {sT}"); E(f"s_lshl_b32 {sT2}, {sT}, 3"); E(f"s_add_u32 {sT2}, {sT2}, {sLO}")
E(f"s_cmp_lt_u32 {sT}, 28"); E(f"s_cselect_b32 {sA2}, 1, 0"); E(f"s_cselect_b32 s7, s7, {sT2}")
E(f"s_mov_b32 {sLAY}, 0"); E(f"s_mov_b32 {sBUD}, 40000")
E("s_waitcnt lgkmcnt(0)")
srd(SWQ,86,1024*4096*2)
E("s_cmp_ge_u32 s3, 4"); E("s_cbranch_scc1 L_common")
def tile_voff(v,stride):
    E(f"v_lshrrev_b32 v{v}, 2, v{vLANE}"); E(f"v_mul_u32_u24 v{v}, {stride}, v{v}")
    E(f"v_and_b32 v{v+1}, 3, v{vLANE}"); E(f"v_lshl_add_u32 v{v}, v{v+1}, 4, v{v}")
    E(f"s_lshl_b32 {sT2}, {sW}, 6"); E(f"v_add_u32 v{v}, {sT2}, v{v}")
SWZ=int(opts.get('swz',0))
def swz_fix():
    if SWZ==1:
        E(f"s_bfe_u32 {sT2}, {sT}, 0x20008"); E(f"s_sub_u32 {sT2}, {sW}, {sT2}"); E(f"s_mul_i32 {sT2}, {sT2}, 192"); E(f"s_add_u32 {sT}, {sT}, {sT2}")
    if SWZ==2:
        E(f"s_bfe_u32 {sT2}, {sT}, 0x10008"); E(f"s_lshl_b32 {sT2}, {sT2}, 7"); E(f"s_sub_u32 {sT}, {sT}, {sT2}")
        E(f"s_lshr_b32 {sT2}, {sW}, 1"); E(f"s_lshl_b32 {sT2}, {sT2}, 7"); E(f"s_add_u32 {sT}, {sT}, {sT2}")
def tile_loads(dst,v,srdn,step):
    if step>4096: swz_fix()
    for i in range(8):
        E(f"buffer_load_dwordx4 {vr(dst+4*i,4)}, v{v}, {srdn}, {sT} offen"+(" nt" if NT and (int(opts.get('ntm','63'))>>(dst//32))&1 else ""))
        if i<7: E(f"s_add_u32 {sT}, {sT}, {step}")
RWQ,RK,RV,RWO,RW1,RW2,RB,RD=0,32,64,96,128,160,192,208
def ld_wq():
    tile_voff(RD,8192); E(f"s_lshl_b32 {sT}, {sLO}, 20"); E(f"s_lshl_b32 {sT2}, {sHI}, 8"); E(f"s_add_u32 {sT}, {sT}, {sT2}")
    tile_loads(RWQ,RD,SWQ,16*8192)
ld_wq()
L("L_common")
E(f"s_mov_b32 s1, {EPO:#x}"); E("s_load_dword s0, s[100:101], s1")
srd(WS,100,WS_REC); srd(SX,80,16384); srd(SOUT,96,16384)
def lin(dst,base,terms):
    E(f"s_mov_b32 {dst}, {base:#x}")
    for r,sh in terms:
        E(f"s_lshl_b32 {sT2}, {r}, {sh}"); E(f"s_add_u32 {dst}, {dst}, {sT2}")
E("s_cmp_ge_u32 s3, 4"); E("s_cbranch_scc1 L_common2")
srd(SK,82,8*4*4096*128*2); srd(SV,84,8*4*4096*128*2); srd(SWO,88,4096*1024*2); srd(SW1,92,1024*3584*2); srd(SW2,94,3584*1024*2)
def kv_base():
    lin(sT,3072*256,[(sLO,22),("s4",20),("s5",15)])
def ld_k():
    kv_base(); E(f"s_lshl_b32 {sT2}, {sW}, 13"); E(f"s_add_u32 {sT}, {sT}, {sT2}")
    tile_loads(RK,vL16,SK,1024)
def ld_v():
    tile_voff(RD+2,256); kv_base(); tile_loads(RV,RD+2,SV,16*256)
def ld_wo():
    tile_voff(RD+4,2048); lin(sT,0,[(sETA,18),("s5",8)]); E(f"s_xor_b32 {sT}, {sT}, 0x200"); tile_loads(RWO,RD+4,SWO,16*2048)
def inact(flag,v):
    E(f"s_cmp_eq_u32 {flag}, 1"); E(f"s_cselect_b32 {sT}, {sT}, 0"); E(f"s_cselect_b32 {sT2}, 0, 0x40000000"); E(f"v_or_b32 v{v}, {sT2}, v{v}")
def ld_w1():
    tile_voff(RD+6,7168); E(f"s_mul_i32 {sT}, {sLO}, {128*7168}"); E(f"s_lshr_b32 {sT2}, s6, 3"); E(f"s_lshl_b32 {sT2}, {sT2}, 8"); E(f"s_add_u32 {sT}, {sT}, {sT2}")
    inact(sA1,RD+6); tile_loads(RW1,RD+6,SW1,16*7168)
def ld_w2():
    tile_voff(RD+4,2048); E(f"s_lshr_b32 {sT}, s7, 3"); E(f"s_lshl_b32 {sT}, {sT}, 18"); E(f"s_and_b32 {sT2}, s7, 7"); E(f"s_lshl_b32 {sT2}, {sT2}, 8"); E(f"s_add_u32 {sT}, {sT}, {sT2}"); inact(sA2,RD+4); tile_loads(RW2,RD+4,SW2,16*2048)
sched={0:[[ld_k,ld_v,ld_wo,ld_w1,ld_w2],[],[],[],[]],
       1:[[ld_k,ld_v],[ld_wo],[ld_w1],[ld_w2],[]],
       2:[[ld_k],[ld_v],[ld_wo],[ld_w1],[ld_w2]],
       3:[[ld_k,ld_v],[ld_wo,ld_w1],[ld_w2],[],[]],4:[[],[],[],[],[]]}[4]
order=['wq']; names={ld_k:'k',ld_v:'v',ld_wo:'wo',ld_w1:'w1',ld_w2:'w2'}
q=['wq']*8
def issue(pt):
    for f in sched[pt]:
        f(); q.extend([names[f]]*8)
def iss(f):
    f(); q.extend([names[f]]*8)
NB={t:int(c) for t,c in zip("aof",opts.get('nb','000'))}
def release(tag,at):
    m=NB.get(tag,0) if tag else 0
    if m==0: return
    if (m==3 and at==0) or (m==1 and at==1): E("s_barrier")
    if (m==2 and at==1) or (m==4 and at==0):
        if tag=="f": E("s_waitcnt vmcnt(0)")
        else:
            last=max(i for i,x in enumerate(q) if x=='st'); E(f"s_waitcnt vmcnt({len(q)-1-last})")
        E("s_barrier")
def ack(tag=None):
    if tag: E(f"s_cmp_eq_u32 {sLAY}, 0"); E(f"s_cbranch_scc1 L_na_{tag}")
    if int(opts.get('ak',1)): E("s_waitcnt vmcnt(0)")
    ad=int(opts.get('ad'+(tag or '2'),opts.get('ad',0)))
    if ad: E(f"s_sleep {ad}")
    late=tag and NB.get(tag,0)
    if tag and not late: L(f"L_na_{tag}")
    E("s_barrier")
    if late: L(f"L_na_{tag}")
def wait_for(nm):
    last=max(i for i,x in enumerate(q) if x==nm); n=len(q)-1-last
    E(f"s_waitcnt vmcnt({n})")
    stamp2({'wq':11,'clr':12,'k':13,'v':14,'wo':15,'w1':16,'w2':17,'c1':18}[nm])
EXP=opts.get('exp','')
SC=int(opts.get('sc',0)); YB=int(opts.get('yb',1)) or SC in (5,7,8)
if SC in (1,2) and not EXP: iss(ld_k)
L("L_common2")
lin(S['pQP'],QP,[("s2",11)]); lin(S['pAP'],AP,[("s4",17),(sLO,14),("s5",11)]); lin(S['pAST'],AST,[("s4",13),(sLO,10),("s5",7)])
lin(S['pOP'],OP,[("s5",16),(sETA,11)]); E(f"s_xor_b32 {S['pOP']}, {S['pOP']}, 0x20000"); lin(S['pF1'],F1P,[("s6",11)])
E(f"s_lshr_b32 {sC0}, s7, 3"); E(f"s_and_b32 {sC1}, s7, 7"); lin(S['pF2'],F2P,[(sC1,16),(sC0,11)])
lin(S['pQST'],QST,[("s2",7)]); lin(S['pF1ST'],F1ST,[("s6",7)])
if STAMP:
    for i in range(20): E(f"s_mov_b32 s{STS+i}, 0")
stamp(0)
if EXP:
    E("s_cmp_ge_u32 s3, 4"); E("s_cbranch_scc1 L_fin")
    E("s_waitcnt vmcnt(0)"); stamp(1)
    for i,f in enumerate([ld_k,ld_v,ld_wo,ld_w1,ld_w2,ld_wq,ld_k]):
        f(); E("s_waitcnt vmcnt(0)"); stamp(2+i)
    E("s_branch L_fin")
    for nm in ('k','v','wo','w1','w2'): q.extend([nm]*8)
vEP=248
E("s_cmp_lt_u32 s3, 4"); E("s_cbranch_scc1 L_wt")
sec('wt'); L("L_wt")
E(f"s_lshl_b32 {sT}, {sW}, 6"); E(f"v_lshl_add_u32 v249, v{vG}, 4, {sT}")
E(f"s_lshl_b32 {sT}, {sW}, 9"); E(f"v_lshl_add_u32 v{vAQ}, v{vN}, 6, {sT}"); E(f"v_lshl_add_u32 v{vAQ}, v{vG}, 4, v{vAQ}"); E(f"v_lshl_add_u32 v{vAL}, v{vG}, 7, {sT}"); E(f"v_lshl_add_u32 v{vAL}, v{vN}, 4, v{vAL}")
E(f"s_mul_i32 {sT}, s6, 1792"); E(f"s_sub_u32 {sT}, {F1CS-F1P:#x}, {sT}")
setexec(0x01000100,0x01000100); E(f"v_add_u32 v{vAL}, {sT}, v249")
E(f"s_mul_i32 {sT}, s2, 1792"); E(f"s_sub_u32 {sT}, 0x80000, {sT}"); E(f"v_add_u32 v{vAQ}, {sT}, v249"); fullexec()
def flag_store(word):
    lin(sT,FLG+word*4,[("s2",7)])
    setexec(1,0); E(f"buffer_store_dword v{vEP}, off, {WS}, {sT} sc1"); fullexec()
M8=(0x00FF00FF,0x00FF00FF); M9=(0x01FF01FF,0x01FF01FF)
def bump(keys):
    for k in keys: E(f"s_add_u32 {S[k]}, {S[k]}, {LS:#x}")
def l0only(tag):
    E(f"s_cmp_lg_u32 {sLAY}, 0"); E(f"s_cbranch_scc1 L_skip_{tag}")
def bounce(nm,R,natural,nxt=None,rel=None):
    t=RD+8
    E(f"s_mul_i32 {sT}, {sW}, {BSZ}"); E(f"s_add_u32 {sT}, {sT}, {BOUNCE}")
    E(f"v_add_u32 v{t}, {sT}, v{vL16}")
    E(f"v_lshrrev_b32 v{t+1}, 2, v{vN}"); E(f"v_lshl_add_u32 v{t+1}, v{vG}, {3 if natural else 2}, v{t+1}")
    E(f"v_lshlrev_b32 v{t+1}, 6, v{t+1}"); E(f"v_and_b32 v{t+2}, 3, v{vLANE}"); E(f"v_lshl_add_u32 v{t+1}, v{t+2}, 4, v{t+1}")
    E(f"v_add_u32 v{t+1}, {sT}, v{t+1}")
    wait_for(nm)
    if nm=='v' and YB: E("s_barrier")
    if nxt: iss(nxt)
    for i in range(8): E(f"ds_write_b128 v{t}, {vr(R+4*i,4)} offset:{i*1024}")
    E("s_waitcnt lgkmcnt(0)")
    release(rel,0)
    for tt in range(2):
        for k in range(4):
            for u in range(2):
                E(f"ds_read_b64_tr_b16 {vr(R+16*tt+4*k+2*u,2)}, v{t+1} offset:{k*2048+u*(256 if natural else 1024)+8*tt}")
    E("s_waitcnt lgkmcnt(0)")
    release(rel,1)
def bounce_k():
    t=RD+8
    E(f"s_mul_i32 {sT}, {sW}, {BSZ}"); E(f"s_add_u32 {sT}, {sT}, {BOUNCE}")
    E(f"v_mul_u32_u24 v{t}, 272, v{vG}"); E(f"v_lshl_add_u32 v{t}, v{vN}, 4, v{t}"); E(f"v_add_u32 v{t}, {sT}, v{t}")
    E(f"v_mul_u32_u24 v{t+1}, 272, v{vN}"); E(f"v_lshl_add_u32 v{t+1}, v{vG}, 4, v{t+1}"); E(f"v_add_u32 v{t+1}, {sT}, v{t+1}")
    VE=int(opts.get('ve',1))
    if VE: iss(ld_v)
    wait_for('k')
    if SC in (0,7,8) and not VE: iss(ld_v)
    for i in range(8): E(f"ds_write_b128 v{t}, {vr(RK+4*i,4)} offset:{i*1088}")
    E("s_waitcnt lgkmcnt(0)")
    for tt in range(2):
        for k in range(4): E(f"ds_read_b128 {vr(RK+16*tt+4*k,4)}, v{t+1} offset:{tt*16*272+k*64}")
    E("s_waitcnt lgkmcnt(0)")
def read_b(base):
    for k in range(4): E(f"ds_read_b128 {vr(RB+4*k,4)}, v{vL16} offset:{base+k*1024}")
def mm(R):
    for k in range(4):
        E(f"s_waitcnt lgkmcnt({3-k})" if not STAMP else "s_waitcnt lgkmcnt(0)")
        for tt in range(2): mfma(RD+4*tt,R+16*tt+4*k,RB+4*k,None if k==0 else RD+4*tt)
def pack_store(src,va,so,mask):
    for i in range(4): E(f"v_cvt_pk_bf16_f32 v{RD+8+i}, v{src+2*i}, v{src+2*i+1}")
    if mask is M9: E(f"s_mov_b32 exec_lo, {sC0}"); E(f"s_mov_b32 exec_hi, {sC0}")
    else: setexec(*mask)
    E(f"buffer_store_dwordx4 {vr(RD+8,4)}, v{va}, {WS}, {so} offen sc1"); fullexec(); q.append('st')
def gemm_phase(R,p,va,so,mask):
    read_b(OPB[p]); mm(R); nop(8); pack_store(RD,va,so,mask)
E(f"s_mov_b32 {sC0}, 0x01FF01FF"); E("s_waitcnt lgkmcnt(0)")
if SC==5: E("s_barrier"); iss(ld_k)
L("L_wloop")
l0only("wq"); bounce('wq',RWQ,False,ld_v if SC in (1,2,5) else ld_k); L("L_skip_wq")
E("s_barrier")
stamp(1)
gemm_phase(RWQ,0,vAQ,S['pQP'],M9)
stamp(2)
ack("q")
l0only("k"); bounce_k(); bounce('v',RV,False,ld_wo if SC!=1 else None); L("L_skip_k")
E("s_barrier")
stamp(3)
def at_bar(tag,f):
    l0only(tag); iss(f); L("L_skip_"+tag)
def l1clear():
    for i in range(4): E(f"v_mov_b32 v{240+i}, -1")
    E(f"s_lshl_b32 {sT}, s6, 2"); E(f"s_add_u32 {sT}, {sT}, {sW}"); E(f"s_mul_i32 {sT}, {sT}, 3072"); E(f"s_add_u32 {sT}, {sT}, {LS:#x}")
    E(f"v_mov_b32 v244, v{vL16}"); inact(sA1,244)
    for i in range(3): E(f"buffer_store_dwordx4 v[240:243], v244, {WS}, {sT} offen offset:{i*1024} sc1"); q.append('c1')
read_b(OPB[1])
if SC==1: at_bar("iwo",ld_wo)
if SC in (2,5,7,8): at_bar("iw1",ld_w1)
mm(RK);
E(f"s_mov_b32 {sT}, 0x3e0293ee")
nop(7)
d=RD; t=RD+8
E(f"v_max3_f32 v{t}, v{d}, v{d+1}, v{d+2}"); E(f"v_max3_f32 v{t+1}, v{d+3}, v{d+4}, v{d+5}")
E(f"v_max3_f32 v{t}, v{t}, v{d+6}, v{d+7}"); E(f"v_max_f32 v{t}, v{t}, v{t+1}")
def xrow(op,a,b):
    for sw in ("16","32"):
        E(f"v_mov_b32 v{b}, v{a}"); nop(2); E(f"v_permlane{sw}_swap_b32 v{a}, v{b}"); E(f"{op} v{a}, v{a}, v{b}")
xrow("v_max_f32",t,t+1)
E(f"v_mul_f32 v{t}, {sT}, v{t}")
for i in range(8): E(f"v_fma_f32 v{d+i}, v{d+i}, {sT}, -v{t}")
for i in range(8): E(f"v_exp_f32 v{d+i}, v{d+i}")
nop(1)
for i in range(4): E(f"v_cvt_pk_bf16_f32 v{t+4+i}, v{d+2*i}, v{d+2*i+1}")
E(f"s_lshl_b32 {sT}, {sW}, 10"); E(f"v_add_u32 v{t+2}, {sT}, v{vL16}")
E(f"ds_write_b128 v{t+2}, {vr(t+4,4)} offset:{PB}")
E(f"v_add_f32 v{d}, v{d}, v{d+1}"); E(f"v_add_f32 v{d+2}, v{d+2}, v{d+3}"); E(f"v_add_f32 v{d+4}, v{d+4}, v{d+5}"); E(f"v_add_f32 v{d+6}, v{d+6}, v{d+7}")
E(f"v_add_f32 v{d}, v{d}, v{d+2}"); E(f"v_add_f32 v{d+4}, v{d+4}, v{d+6}"); E(f"v_add_f32 v{t+1}, v{d}, v{d+4}")
xrow("v_add_f32",t+1,t+3)
E(f"s_lshl_b32 {sT}, {sW}, 3"); E(f"v_lshl_add_u32 v{t+2}, v{vN}, 5, {sT}")
setexec(0xFFFF,0); E(f"ds_write_b64 v{t+2}, {vr(t,2)} offset:{SMB}"); fullexec()
E("s_waitcnt lgkmcnt(0)")
E("s_barrier")
E(f"v_lshlrev_b32 v249, 5, v{vN}")
read_b(PB)
E(f"ds_read_b128 v[240:243], v249 offset:{SMB}"); E(f"ds_read_b128 v[244:247], v249 offset:{SMB+16}")
for k in range(4):
    E(f"s_waitcnt lgkmcnt({5-k})" if not STAMP else "s_waitcnt lgkmcnt(0)")
    for tt in range(2): mfma(RD+8*k+4*tt,RV+16*tt+4*k,RB+4*k,None)
E("s_waitcnt lgkmcnt(0)")
E("v_max3_f32 v248, v240, v242, v244"); E("v_max_f32 v248, v248, v246")
for i in range(4): E(f"v_sub_f32 v{240+2*i}, v{240+2*i}, v248")
for i in range(4): E(f"v_exp_f32 v{240+2*i}, v{240+2*i}")
nop(1)
E("v_mul_f32 v249, v240, v241")
for i in range(1,4): E(f"v_fmac_f32 v249, v{240+2*i}, v{241+2*i}")
for i in range(8): E(f"v_mul_f32 v{RD+i}, v240, v{RD+i}")
for k in range(1,4):
    for i in range(8): E(f"v_fmac_f32 v{RD+i}, v{240+2*k}, v{RD+8*k+i}")
pack_store(RD,vAQ,S['pAP'],M8)
E(f"s_lshl_b32 {sT}, {sW}, 30"); E(f"v_lshl_add_u32 v240, v{vN}, 3, {sT}")
setexec(0xFF,0)
E(f"buffer_store_dwordx2 v[248:249], v240, {WS}, {S['pAST']} offen sc1"); fullexec(); q.append('st')
stamp(4)
ack("a")
l0only("wo")
JIT=int(opts.get('jit',0)); BOTH=int(opts.get('both',0))
if BOTH:
    if BOTH==2: l1clear()
    iss(ld_w1); iss(ld_w2)
    if BOTH==1: l1clear()
    bounce('wo',RWO,True); bounce('w1',RW1,False)
elif JIT:
    if 'c1e' in opts: l1clear()
    bounce('wo',RWO,True,ld_w1,'a')
    if JIT==2: wait_for('w1'); iss(ld_w2)
elif SC==0: bounce('wo',RWO,True,ld_w1); bounce('w1',RW1,False,None if 'w2d' in opts else ld_w2)
elif SC in (7,8): bounce('wo',RWO,True); bounce('w1',RW1,False,ld_w2 if SC==7 else None)
else:
    if SC==5: iss(ld_w2)
    l1clear(); bounce('wo',RWO,True)
if SC in (2,5): bounce('w1',RW1,False)
L("L_skip_wo")
E("s_barrier")
stamp(5)
if SC==1: at_bar("iw1",ld_w1)
if SC in (2,8) or opts.get('w2d')=='1': at_bar("iw2",ld_w2)
gemm_phase(RWO,2,vAL,S['pOP'],M8)
ack("o")
l0only("w1")
if opts.get('w2d')=='2': iss(ld_w2)
if SC in (0,7,8) and BOTH in (0,3) and 'c1e' not in opts: l1clear()
if JIT:
    if JIT==3: E("s_barrier")
    bounce('w1',RW1,False,ld_w2 if JIT!=2 else None,'o'); wait_for('c1')
elif SC==1: bounce('w1',RW1,False)
else: bounce('w2',RW2,False); E("s_waitcnt vmcnt(0)"); stamp2(18)
L("L_skip_w1")
E("s_barrier")
stamp(6)
if SC==1: at_bar("iw2",ld_w2)
E(f"s_cmp_eq_u32 {sA1}, 0"); E("s_cbranch_scc1 L_nof1")
gemm_phase(RW1,3,vAL,S['pF1'],M9); q.pop()
L("L_nof1")
if SC==1 or JIT: ack("f"); l0only("w2"); bounce('w2',RW2,False,None,'f'); L("L_skip_w2")
else: ack()
E("s_barrier")
stamp(7)
E(f"s_cmp_eq_u32 {sA2}, 0"); E("s_cbranch_scc1 L_nof2")
gemm_phase(RW2,4,vAL,S['pF2'],M8)
L("L_nof2")
stamp(8)
ack()
bump(['pQP','pAP','pAST','pOP','pF1','pF2']); E(f"s_mov_b32 {sC0}, 0x00FF00FF")
E(f"s_add_u32 {sLAY}, {sLAY}, 1"); E(f"s_cmp_lt_u32 {sLAY}, 2"); E("s_cbranch_scc1 L_wloop")
E("s_branch L_fin")
sec('cm')
G=0; X=64; MP=72; A1=80; AG=88; D0=92; D1=96; D2=100; D3=104; T=108; AW=160
vG1,vCS,vST,vG3,vAST,vLW,vSTa,vOW,vONE=140,141,142,143,144,145,146,147,148
E(f"v_and_b32 v{T}, 7, v{vN}"); E(f"v_lshrrev_b32 v{T+1}, 3, v{vN}")
E(f"v_lshlrev_b32 v{vOW}, 11, v{T}"); E(f"v_lshl_add_u32 v{vOW}, v{vG}, 3, v{vOW}")
lin(sT,0,[(sLO,8),(sW,6)]); E(f"v_add_u32 v{vOW}, {sT}, v{vOW}")
E(f"buffer_load_dwordx2 v[{T+8}:{T+9}], v{vOW}, {SX}, 0 offen"); E(f"buffer_load_dwordx2 v[{T+10}:{T+11}], v{vOW}, {SX}, 0 offen offset:32")
for i in range(4): E(f"v_mov_b32 v{G+i}, -1")
E(f"s_cmp_lg_u32 {sW}, 1"); E("s_cbranch_scc1 L_cl2")
for i in range(2): E(f"buffer_store_dwordx4 {vr(G,4)}, v{vL16}, {WS}, {S['pQP']} offen offset:{i*1024} sc1")
E(f"v_lshlrev_b32 v{T+2}, 4, v{vN}"); lin(sT,QP+0x80000,[("s2",8)]); E(f"v_add_u32 v{T+3}, {sT}, v{T+2}")
setexec(0xFF0000,0); E(f"v_add_u32 v{T+3}, {S['pQST']}, v{T+2}")
setexec(0,0xFF); E(f"v_add_u32 v{T+3}, {S['pAST']}, v{T+2}")
setexec(0xFFFFFF,0xFF); E(f"buffer_store_dwordx4 {vr(G,4)}, v{T+3}, {WS}, 0 offen sc1"); fullexec()
L("L_cl2")
E(f"s_mov_b32 {sT}, {S['pAP']}")
E(f"s_cmp_eq_u32 {sW}, 0"); E(f"s_cselect_b32 {sT}, {S['pOP']}, {sT}")
E(f"s_cmp_eq_u32 {sW}, 2"); E(f"s_cselect_b32 {sT}, {S['pF1']}, {sT}")
E(f"s_cmp_eq_u32 {sW}, 3"); E(f"s_cselect_b32 {sT}, {S['pF2']}, {sT}")
for i in range(2): E(f"buffer_store_dwordx4 {vr(G,4)}, v{vL16}, {WS}, {sT} offen offset:{i*1024} sc1")
E(f"s_bitcmp1_b32 {sW}, 0"); E("s_cbranch_scc1 L_nsm")
lin(sT,F1CS,[("s6",8)])
E(f"s_cmp_eq_u32 {sW}, 0"); E(f"s_cselect_b32 {sT}, {S['pF1ST']}, {sT}"); E(f"s_cselect_b32 exec_lo, 0xff, -1"); E("s_and_b32 exec_lo, exec_lo, 0xffff"); E("s_mov_b32 exec_hi, 0")
E(f"buffer_store_dwordx4 {vr(G,4)}, v{vL16}, {WS}, {sT} offen sc1")
L("L_nsm"); fullexec(); stamp2(12)
if SC==5: E("s_barrier")
E(f"v_lshlrev_b32 v{vSTa}, 3, v{T}"); setexec(0xFFFFFFFF,0); E(f"v_add_u32 v{vSTa}, 4, v{vSTa}")
fullexec()
lin(S['gF2'],(F2P-LS)&0xffffffff,[(sLO,16)]); lin(S['gOP'],OP,[(sLO,16)]); lin(S['gQP'],QP,[("s4",17),(sLO,6)]); lin(S['gQCS'],QP+8*65536,[("s4",14)])
lin(S['gQST'],QST,[(sHI,10),(sLO,3)]); lin(S['gAP'],AP,[("s4",17),(sLO,6)]); lin(S['gAST'],AST,[("s4",13),(sLO,3)])
E(f"s_lshr_b32 {sC0}, s7, 3")
lin(S['gF1'],F1P,[(sC0,14)]); lin(S['gF1CS'],F1CS,[(sC0,11)]); lin(S['gF1ST'],F1ST,[(sC0,10)])
E(f"v_and_b32 v{T+3}, 2, v{vG}"); E(f"v_add_u32 v{T+3}, v{T+3}, v{T+1}")
E(f"v_and_b32 v{T+4}, 1, v{vG}")
E(f"s_lshl_b32 {sT}, {sW}, 9"); E(f"v_lshl_add_u32 v{vG1}, v{T+3}, 11, {sT}"); E(f"v_lshl_add_u32 v{vG1}, v{T+4}, 7, v{vG1}"); E(f"v_lshl_add_u32 v{vG1}, v{T}, 4, v{vG1}")
E(f"s_lshl_b32 {sT}, {sW}, 6"); E(f"v_lshl_add_u32 v{vCS}, v{T+3}, 8, {sT}"); E(f"v_lshl_add_u32 v{vCS}, v{T+4}, 4, v{vCS}")
E(f"v_lshl_add_u32 v{vST}, v{vG}, 1, v{T+1}"); E(f"v_lshlrev_b32 v{vST}, 7, v{vST}")
E(f"v_lshl_add_u32 v149, v{T}, 3, v{vST}")
E(f"s_lshl_b32 {sT}, {sW}, 12"); E(f"v_lshl_add_u32 v{vG3}, v{vG}, 9, {sT}"); E(f"v_lshl_add_u32 v{vG3}, v{vN}, 4, v{vG3}")
E(f"s_lshl_b32 {sT}, {sW}, 11"); E(f"v_lshl_add_u32 v{vAST}, v{T+1}, 10, {sT}"); E(f"v_lshl_add_u32 v{vAST}, v{vG}, 8, v{vAST}")
E(f"s_lshl_b32 {sT}, {sW}, 15"); E(f"v_lshl_add_u32 v151, v{vG}, 12, {sT}"); E(f"v_lshrrev_b32 v152, 2, v{vN}"); E("v_lshl_add_u32 v151, v152, 9, v151")
E(f"v_and_b32 v152, 3, v{vN}"); E("v_lshl_add_u32 v151, v152, 4, v151"); E("v_add_u32 v152, 0x4000, v151")
E(f"s_lshl_b32 {sT}, {sW}, 5"); E(f"v_lshl_add_u32 v{vLW}, v{vG}, 3, {sT}"); E(f"v_lshl_add_u32 v{vLW}, v{vN}, 8, v{vLW}")
E(f"s_lshl_b32 {sT}, {sW}, 10"); E(f"v_add_u32 v150, {sT}, v{vL16}")
lin(sC0,0,[("s4",13),(sW,11)]); E(f"v_lshl_add_u32 v191, v{vN}, 7, {sC0}")
E(f"s_lshl_b32 {sC0}, {sHI}, 10"); setexec(0xFF0000,0); E(f"v_lshl_add_u32 v191, v{vN}, 7, {sC0}"); fullexec()
E(f"v_mov_b32 v{vONE}, 1.0"); lin(sC0,4,[(sW,13)]); E(f"v_lshl_add_u32 v188, v{vLANE}, 7, {sC0}")
E(f"v_and_b32 v{T+5}, 1, v{vN}"); E(f"v_lshlrev_b32 v{T+5}, 4, v{T+5}"); E(f"v_mov_b32 v{T+6}, 0xffff"); E(f"v_lshlrev_b32 v{T+6}, v{T+5}, v{T+6}")
E(f"v_lshrrev_b32 v{T+5}, 1, v{vN}")
for i in range(8):
    E(f"v_cmp_eq_u32 vcc, {i}, v{T+5}"); nop(2); E(f"v_cndmask_b32 v{MP+i}, 0, v{T+6}, vcc")
for i in range(8): E(f"v_and_b32 v{A1+i}, 0x3f803f80, v{MP+i}")
E(f"v_cmp_eq_u32 vcc, 0, v{T+4}"); nop(2)
for i in range(4): E(f"v_cndmask_b32 v{AG+i}, v{A1+4+i}, v{A1+i}, vcc")
stamp2(13)
E("s_waitcnt vmcnt(5)"); E(f"s_cmp_eq_u32 {sW}, 1"); E("s_cbranch_scc1 L_x0p")
E("s_waitcnt vmcnt(3)"); E(f"s_cmp_lg_u32 {sW}, 3"); E("s_cbranch_scc1 L_x0p")
E("s_waitcnt vmcnt(2)"); L("L_x0p"); stamp2(14); E("s_waitcnt lgkmcnt(0)"); E("s_add_u32 s0, s0, 1"); E(f"v_mov_b32 v{vEP}, s0")
uid=[0]
def gld(dst,va,so,off,sel):
    if sel:
        uid[0]+=1
        E(f"v_max3_u32 v190, v{dst}, v{dst+1}, v{dst+2}"); E(f"v_max_u32 v190, v190, v{dst+3}"); E("v_cmp_eq_u32 vcc, -1, v190")
        E("s_mov_b64 exec, vcc"); E(f"s_cbranch_execz L_sl{uid[0]}")
    E(f"buffer_load_dwordx4 {vr(dst,4)}, v{va}, {WS}, {so} offen offset:{off} sc1")
    if sel: L(f"L_sl{uid[0]}"); fullexec()
def poll_end(tag,regs,loads):
    E(f"v_cmp_u_f32 {sP}, v{regs[0]}, v{regs[1]}")
    if len(regs)>2:
        E(f"v_cmp_u_f32 vcc, v{regs[2]}, v{regs[3]}"); E(f"s_or_b64 {sP}, {sP}, vcc")
    E(f"s_cmp_lg_u64 {sP}, 0"); E(f"s_cbranch_scc1 L_rt_{tag}")
    old=sec('rt'); L(f"L_rt_{tag}")
    E(f"s_sub_u32 {sBUD}, {sBUD}, 1"); E(f"s_cmp_lt_i32 {sBUD}, 0"); E(f"s_cbranch_scc1 L_pd_{tag}")
    if int(opts.get('slp',0)): E(f"s_sleep {opts['slp']}")
    loads(True); E("s_waitcnt vmcnt(0)"); E(f"s_branch L_pm_{tag}"); sec(old)
    L(f"L_pd_{tag}")
def ror8(r,n):
    for i in range(n): E(f"v_add_f32_dpp v{r+i}, v{r+i}, v{r+i} row_ror:8 row_mask:0xf bank_mask:0xf")
def g1(tag,key,ng):
    def loads(sel):
        E(f"s_mov_b32 {sT}, {S[key]}")
        for i in range(ng):
            for h in range(2): gld(G+8*i+4*h,vG1,sT,h*256,sel)
            if i<ng-1: E(f"s_add_u32 {sT}, {sT}, 8192")
    loads(False)
    if tag=="o" and JIT==3: l0only("y2"); E("s_barrier"); L("L_skip_y2")
    L(f"L_pm_{tag}")
    for i in range(ng):
        for h in range(2):
            E(f"s_waitcnt vmcnt({2*ng-1-2*i-h})"); mfma(D0+4*h,AG,G+8*i+4*h,None if i==0 else D0+4*h)
    nop(8); poll_end(tag,[D0,D1],loads); ror8(D0,8)
    for i in range(8): E(f"v_add_f32 v{D0+i}, v{D0+i}, v{X+i}")
    for i in range(4): E(f"v_cvt_pk_bf16_f32 v{T+8+i}, v{D0+2*i}, v{D0+2*i+1}")
def x_out(p):
    for i in range(4):
        E(f"v_lshlrev_b32 v{X+2*i}, 16, v{T+8+i}"); E(f"v_and_b32 v{X+2*i+1}, 0xffff0000, v{T+8+i}")
    setexec(0xFF00FF00,0xFF00FF00)
    for i in range(4): E(f"v_mov_b32 v{T+8+i}, 0x3f803f80")
    fullexec()
    E(f"ds_write_b128 v150, {vr(T+8,4)} offset:{OPB[p]}"); E("s_waitcnt lgkmcnt(0)")
def gram(tag,p,key):
    for k in range(4): E(f"ds_read_b128 {vr(G+4*k,4)}, v{vL16} offset:{OPB[p]+k*1024}")
    E("s_waitcnt lgkmcnt(0)")
    for k in range(4): mfma(D0,G+4*k,G+4*k,None if k==0 else D0)
    nop(8)
    for i in range(1,4):
        setexec((1<<i)|(1<<(20+i)),0); E(f"v_mov_b32 v{D0}, v{D0+i}")
    setexec(0x00F0000F,0xFF); E(f"buffer_store_dword v{D0}, v{vSTa}, {WS}, {S[key]} offen sc1"); fullexec()
def ln_stats(r):
    ror8(D2,1); ror8(D3,1)
    E(f"s_mov_b32 {sT}, 0x3a800000")
    E(f"v_mul_f32 v{D2}, {sT}, v{D2}"); E(f"v_mul_f32 v{D3}, {sT}, v{D3}")
    E(f"v_fma_f32 v{D3}, -v{D2}, v{D2}, v{D3}"); E(f"v_max_f32 v{D3}, 0, v{D3}"); E(f"v_add_f32 v{D3}, 0x3727c5ac, v{D3}")
    E(f"v_rsq_f32 v{D3}, v{D3}")
def stat_mfma(r):
    E(f"v_mfma_f32_16x16x4_f32 {vr(D2,4)}, v{vONE}, v{r}, 0"); E(f"v_mfma_f32_16x16x4_f32 {vr(D3,4)}, v{vONE}, v{r+1}, 0")
sec('g1f')
E(f"s_cmp_lt_u32 {sLAY}, 2"); E("s_cbranch_scc1 L_nf"); E(f"s_cmp_lg_u32 {sHI}, {sW}"); E("s_cbranch_scc1 L_fin"); L("L_nf")
g1("f2",'gF2',7)
E(f"s_cmp_lt_u32 {sLAY}, 2"); E("s_cbranch_scc1 L_x0")
setexec(*M8)
E(f"buffer_store_dwordx2 v[{T+8}:{T+9}], v{vOW}, {SOUT}, 0 offen"); E(f"buffer_store_dwordx2 v[{T+10}:{T+11}], v{vOW}, {SOUT}, 0 offen offset:32")
fullexec()
sec('cm'); L("L_x0")
x_out(0)
stamp(1)
l0only("fs"); E(f"s_cmp_lg_u32 {sW}, 1"); E("s_cbranch_scc1 L_skip_fs")
E("s_waitcnt vmcnt(0)"); flag_store(0); stamp2(11); L("L_skip_fs")
E("s_barrier")
E(f"s_cmp_lg_u32 {sW}, 0"); E("s_cbranch_scc1 L_ng0"); gram("q",0,'pQST'); L("L_ng0")
stamp(7)
def flagpoll(tag,lo,hi,T=T,pre=False):
    E(f"s_mov_b32 {sT}, {FLG:#x}"); setexec(lo,hi)
    if pre: E(f"s_branch L_fc{tag}")
    L(f"L_fl{tag}")
    E(f"buffer_load_dword v{T+1}, v{T}, {WS}, {sT} offen sc1"); L(f"L_fc{tag}"); E("s_waitcnt vmcnt(0)")
    E(f"v_cmp_ne_u32 {sP}, v{vEP}, v{T+1}"); E(f"s_cmp_eq_u64 {sP}, 0"); E(f"s_cbranch_scc1 L_fd{tag}")
    E(f"s_sleep {opts.get('fs','2')}")
    E(f"s_sub_u32 {sBUD}, {sBUD}, 1"); E(f"s_cmp_gt_i32 {sBUD}, 0"); E(f"s_cbranch_scc1 L_fl{tag}")
    L(f"L_fd{tag}"); fullexec()
EP=int(opts.get('ep',0))
if EP:
    l0only("fpre"); E(f"s_mov_b32 {sT}, {FLG:#x}"); setexec(0xFFFFFF,0); E(f"buffer_load_dword v192, v191, {WS}, {sT} offen sc1"); fullexec(); L("L_skip_fpre")
E("s_barrier")
l0only("flag")
flagpoll("g",0xFFFFFF,0,191,EP)
L("L_skip_flag")
def l0delay(tag):
    if int(opts.get('l0d',0)): l0only("dl"+tag); E(f"s_sleep {opts['l0d']}"); L("L_skip_dl"+tag)
stamp(2)
CQ=176; CF=180
def ld_q(sel):
    l0only(f"cq0{sel}")
    for p in range(2):
        for i in range(2): gld(G+16+8*p+4*i,vG3,S['gQCS'],p*2048+i*256,sel)
    L(f"L_skip_cq0{sel}")
    E(f"buffer_load_dwordx2 v[{T}:{T+1}], v{vST}, {WS}, {S['gQST']} offen sc1")
    for p in range(2):
        for i in range(2): gld(G+8*p+4*i,151+p,S['gQP'],i*2048,sel)
ld_q(False)
if YB: l0only("y"); E("s_barrier"); L("L_skip_y")
L("L_pm_q")
E("s_waitcnt vmcnt(4)"); stat_mfma(T)
l0only("cq")
for c in range(4): mfma(CQ,A1+4*(c//2),G+16+4*c,None if c==0 else CQ)
L("L_skip_cq")
nop(8); ln_stats(T)
E(f"v_add_f32 v{T+2}, v{D3+1}, v{D2+1}")
for i in range(4): E(f"v_mul_f32 v{D0+i}, -v{D2}, v{CQ+i}")
nop(1)
for c in range(4):
    E(f"s_waitcnt vmcnt({3-c})"); mfma(D0,A1+4*(c//2),G+4*c,D0)
nop(8)
for i in range(4): E(f"v_mul_f32 v{D0+i}, v{D3}, v{D0+i}")
poll_end("q",[D0,T+2],ld_q)
def small_out(p):
    for i in range(2): E(f"v_cvt_pk_bf16_f32 v{T+8+i}, v{D0+2*i}, v{D0+2*i+1}")
    E(f"ds_write_b64 v{vLW}, {vr(T+8,2)} offset:{OPB[p]}"); E("s_waitcnt lgkmcnt(0)")
small_out(1)
stamp(3)
E("s_barrier")
l0only("c1")
E(f"s_cmp_lg_u32 {sW}, 1"); E("s_cbranch_scc1 L_skip_c1"); flag_store(1)
L("L_skip_c1")
E("s_barrier")
E("s_barrier")
l0delay("a")
stamp(8)
def ld_a(sel):
    l0only(f"c3{sel}"); E(f"s_mov_b32 {sT}, {FLG:#x}"); E(f"buffer_load_dword v189, v188, {WS}, {sT} offen sc1"); L(f"L_skip_c3{sel}")
    for i in range(2): E(f"buffer_load_dwordx2 {vr(T+2*i,2)}, v{vAST}, {WS}, {S['gAST']} offen offset:{i*128} sc1")
    for p in range(2):
        for i in range(2): gld(G+8*p+4*i,151+p,S['gAP'],i*2048,sel)
ld_a(False); L("L_pm_a")
E("s_waitcnt vmcnt(4)")
E(f"v_max_f32 v{T+4}, v{T}, v{T+2}"); xrow("v_max_f32",T+4,T+5)
E(f"v_sub_f32 v{T}, v{T}, v{T+4}"); E(f"v_sub_f32 v{T+2}, v{T+2}, v{T+4}"); E(f"v_exp_f32 v{T}, v{T}"); E(f"v_exp_f32 v{T+2}, v{T+2}"); nop(1)
E(f"v_cvt_pk_bf16_f32 v{T}, v{T}, v{T}"); E(f"v_cvt_pk_bf16_f32 v{T+2}, v{T+2}, v{T+2}")
for p in range(2):
    for i in range(2):
        for r in range(4): E(f"v_and_b32 v{AW+8*p+4*i+r}, v{MP+4*p+r}, v{T+2*i}")
E(f"v_and_b32 v{T}, 0xffff0000, v{T}"); E(f"v_and_b32 v{T+2}, 0xffff0000, v{T+2}")
for c in range(4):
    E(f"s_waitcnt vmcnt({3-c})"); mfma(D0,AW+4*c,G+4*c,None if c==0 else D0)
E(f"v_mul_f32 v{T+4}, v{T}, v{T+1}"); E(f"v_fmac_f32 v{T+4}, v{T+2}, v{T+3}"); xrow("v_add_f32",T+4,T+5)
E(f"v_rcp_f32 v{T+4}, v{T+4}"); nop(1)
E(f"v_readlane_b32 {sC0}, v{T+4}, 0"); E(f"v_readlane_b32 {sC1}, v{T+4}, 8"); nop(2)
E(f"v_mov_b32 v{T+4}, {sC1}"); setexec(0xFFFFFFFF,0); E(f"v_mov_b32 v{T+4}, {sC0}"); fullexec()
for i in range(4): E(f"v_mul_f32 v{D0+i}, v{T+4}, v{D0+i}")
poll_end("a",[D0,D0+1],ld_a)
small_out(2)
stamp(4)
E("s_barrier")
l0only("c2"); flagpoll("a",0xFFFFFFFF,0xFFFFFFFF,188,True); L("L_skip_c2")
E("s_barrier")
E(f"s_add_u32 {sT}, s2, {sW}"); E(f"s_add_u32 {sT}, {sT}, {sLAY}"); E(f"s_cmp_lg_u32 {sT}, 0"); E("s_cbranch_scc1 L_nep")
E(f"s_mov_b32 {sT}, {EPO:#x}"); setexec(1,0); E(f"buffer_store_dword v{vEP}, off, {WS}, {sT} sc1"); fullexec()
L("L_nep")
l0delay("o")
g1("o",'gOP',8)
x_out(3)
stamp(5)
E("s_barrier")
E(f"s_cmp_lg_u32 {sW}, 0"); E("s_cbranch_scc1 L_ng1"); E(f"s_cmp_eq_u32 {sA1}, 0"); E("s_cbranch_scc1 L_ng1"); gram("f",3,'pF1ST'); L("L_ng1")
E("s_barrier")
if SC==1 or JIT: l0delay("f")
E(f"s_cmp_eq_u32 {sA2}, 0"); E("s_cbranch_scc1 L_nog2")
E0,E1=AW,AW+4
def ld_h(sel):
    l0only(f"cf0{sel}")
    for i in range(2):
        for h in range(2): gld(G+16+8*i+4*h,vCS,S['gF1CS'],i*1024+h*32,sel)
    L(f"L_skip_cf0{sel}")
    E(f"buffer_load_dwordx2 v[{T}:{T+1}], v149, {WS}, {S['gF1ST']} offen sc1")
    E(f"s_add_u32 {sT}, {S['gF1']}, 8192")
    for i in range(2):
        for h in range(2): gld(G+8*i+4*h,vG1,S['gF1'] if i==0 else sT,h*256,sel)
ld_h(False); L("L_pm_h")
E("s_waitcnt vmcnt(4)"); stat_mfma(T)
l0only("cf")
for c in range(4): mfma(CF+4*(c%2),AG,G+16+4*c,None if c<2 else CF+4*(c%2))
L("L_skip_cf")
nop(8); ln_stats(T)
E(f"v_add_f32 v{T+2}, v{D3+1}, v{D2+1}")
for i in range(8): E(f"v_mul_f32 v{D0+i}, -v{D2}, v{CF+i}")
nop(1)
for c in range(4):
    E(f"s_waitcnt vmcnt({3-c})"); mfma(D0+4*(c%2),AG,G+4*c,D0+4*(c%2))
nop(8)
poll_end("h",[D0,D1,T+2,T+2],ld_h)
ror8(D0,8)
E(f"s_mov_b32 {sT}, 0xbfb8aa3b")
for i in range(8): E(f"v_mul_f32 v{D0+i}, v{D3}, v{D0+i}")
for i in range(8): E(f"v_mul_f32 v{E0+i}, {sT}, v{D0+i}")
for i in range(8): E(f"v_exp_f32 v{E0+i}, v{E0+i}")
for i in range(8): E(f"v_add_f32 v{E0+i}, 1.0, v{E0+i}")
for i in range(8): E(f"v_rcp_f32 v{E0+i}, v{E0+i}")
for i in range(8): E(f"v_mul_f32 v{D0+i}, v{E0+i}, v{D0+i}")
for i in range(4): E(f"v_cvt_pk_bf16_f32 v{T+8+i}, v{D0+2*i}, v{D0+2*i+1}")
E(f"ds_write_b128 v150, {vr(T+8,4)} offset:{OPB[4]}"); E("s_waitcnt lgkmcnt(0)")
L("L_nog2")
stamp(6)
E("s_barrier")
E("s_barrier")
bump(['pQST','pF1ST','gF2','gOP','gQP','gQCS','gQST','gAP','gAST','gF1','gF1CS','gF1ST'])
E(f"s_add_u32 {sLAY}, {sLAY}, 1")
sec('fin'); L("L_fin")
if STAMP:
    E(f"s_mov_b32 {sLAY}, 1"); stamp(9)
    E(f"s_mov_b32 s{STS+9}, {sBUD}")
    E("s_lshl_b32 s4, s2, 3"); E("s_add_u32 s4, s4, s3"); E("s_lshl_b32 s4, s4, 7"); E(f"s_add_u32 s4, s4, {STB_WS:#x}")
    E("v_mov_b32 v1, 0"); setexec(1,0)
    for i in range(20):
        E(f"v_mov_b32 v2, s{STS+i}"); E(f"buffer_store_dword v2, v1, {WS}, s4 offen offset:{4*i}"); nop(2)
    E("s_waitcnt vmcnt(0)")
L("L_end")
E("s_endpgm")
for k in ('cm','g1f','fin','wt','rt'): out.extend(secs[k])
out.append("L_codeend:")
out.append(""".section .rodata,"a"
.p2align 6
.amdhsa_kernel %s_kernel
  .amdhsa_next_free_vgpr 256
  .amdhsa_next_free_sgpr 102
  .amdhsa_accum_offset 256
  .amdhsa_group_segment_fixed_size 0
  .amdhsa_kernarg_size 88
  .amdhsa_user_sgpr_count 2
  .amdhsa_user_sgpr_kernarg_segment_ptr 1
  .amdhsa_system_sgpr_workgroup_id_x 1
.end_amdhsa_kernel"""%NAME)
open(sys.argv[1],"w").write("\n".join(out)+"\n")
```

```python
import sys
NAME="interleave_layers__sliding_block_cached__dense_activation_silu__decode"
opts=dict(a.split('=') for a in sys.argv[2:])
STAMP=int(opts.get('stamp',0))
STAGE=int(opts.get('stage',0))
NT=opts.get('nt','0')=='1'
out=[]
secs={k:[] for k in ('wt','cm','g1f','rt','fin')}; cur=[out]
def sec(k):
    old=cur[0]; cur[0]=secs[k] if isinstance(k,str) else k; return old
def E(s): cur[0].append("    "+s)
def L(s): cur[0].append(s+":")
def C(s): out.append("    ; "+s)
def nop(n): E(f"s_nop {n-1}")
LS=0x300000
AP,OP,F1P,F2P,QST,F1ST,AST,QP,F1CS=0,0x80000,0x100000,0x180000,0x200000,0x208000,0x210000,0x218000,0x2A8000
FLG,EPO=0x2C0000,0x2D0000
STB_WS=0x600000
WS_REC=0x800000
OPB=[0,4096,8192,12288,16384]; PB=20480; SMB=24576; BOUNCE=25600; BSZ=8704
LDS=61440
WS="s[8:11]"; SWQ="s[12:15]"; SK="s[16:19]"; SV="s[20:23]"; SWO="s[24:27]"; SW1="s[28:31]"; SW2="s[32:35]"
SX="s[36:39]"; SOUT="s[40:43]"; SDBG="s[44:47]"
sW,sLO,sHI,sLAY,sBUD,sT,sT2,sETA="s48","s49","s50","s51","s52","s53","s54","s55"
sA1,sA2="s56","s57"
offs=["pQP","pAP","pAST","pOP","pF1","pF2","pQST","pF1ST","gF2","gOP","gQP","gQCS","gQST","gAP","gAST","gF1","gF1CS","gF1ST"]
S={n:f"s{58+i}" for i,n in enumerate(offs)}
sC0,sC1="s76","s77"; sP="s[78:79]"; sP0,sP1="s78","s79"
STS=80
nst=[0]
def stamp(i):
    if STAMP:
        E("s_memrealtime s[100:101]"); E("s_waitcnt lgkmcnt(0)")
        E(f"s_cmp_eq_u32 {sLAY}, 0"); E(f"s_cselect_b32 s{STS+i}, s100, s{STS+i}");
        if STAMP!=2 or i==9: E(f"s_cselect_b32 s{STS+10+i}, s{STS+10+i}, s100")
def stamp2(i):
    if STAMP==2: E("s_memrealtime s[100:101]"); E("s_waitcnt lgkmcnt(0)"); E(f"s_mov_b32 s{STS+i}, s100")
def setexec(lo,hi):
    E(f"s_mov_b32 exec_lo, {lo:#x}"); E(f"s_mov_b32 exec_hi, {hi:#x}")
def fullexec(): E("s_mov_b64 exec, -1")
def vr(a,n): return f"v[{a}:{a+n-1}]"
def mfma(d,a,b,c): E(f"v_mfma_f32_16x16x32_bf16 {vr(d,4)}, {vr(a,4)}, {vr(b,4)}, {('0' if c is None else vr(c,4))}")
def srd(s,ptr,n):
    b=int(s[2:s.index(':')])
    E(f"s_mov_b32 s{b}, s{ptr}"); E(f"s_and_b32 s{b+1}, s{ptr+1}, 0xffff"); E(f"s_mov_b32 s{b+2}, {n:#x}"); E(f"s_mov_b32 s{b+3}, 0x20000")
vL16,vAQ,vAL,vLANE,vN,vG=255,254,253,252,251,250
hdr=open(f"cdna_kernels/{NAME}.s.ref").read().split("; Override")[0]
out.append(hdr.rstrip())
out.append(f"; @launch grid=(256,1,1) block=(512,1,1) lds={LDS}")
out.append('.amdgcn_target "amdgcn-amd-amdhsa--gfx950"\n.text\n.globl %s_kernel\n.p2align 8\n.type %s_kernel,@function\n%s_kernel:'%(NAME,NAME,NAME))
E("s_cmp_ge_u32 s2, 256"); E("s_cbranch_scc1 L_end")
if opts.get('perm'): E("s_lshr_b32 s3, s2, 3"); E("s_and_b32 s2, s2, 7"); E("s_lshl_b32 s2, s2, 5"); E("s_or_b32 s2, s2, s3")
E("s_load_dwordx16 s[80:95], s[0:1], 0")
E("s_load_dwordx4 s[96:99], s[0:1], 64")
E("s_load_dwordx2 s[100:101], s[0:1], 80")
PF=int(opts.get('pf',1))
if PF:
    E("s_getpc_b64 s[4:5]"); L("L_pc")
    E("v_lshlrev_b32 v2, 6, v0"); E("v_min_u32 v2, L_codeend-L_pc-4, v2")
    E("v_mov_b32 v3, s5"); E("v_add_co_u32 v2, vcc, s4, v2"); E("v_addc_co_u32 v3, vcc, 0, v3, vcc")
    E("global_load_dword v247, v[2:3], off")
E("v_lshrrev_b32 v1, 6, v0"); E(f"v_and_b32 v{vLANE}, 63, v0")
E(f"s_and_b32 {sLO}, s2, 7"); E(f"v_readfirstlane_b32 s3, v1"); E(f"s_lshr_b32 {sHI}, s2, 3")
E(f"s_and_b32 {sW}, s3, 3")
E(f"v_lshlrev_b32 v{vL16}, 4, v{vLANE}"); E(f"v_and_b32 v{vN}, 15, v{vLANE}"); E(f"v_lshrrev_b32 v{vG}, 4, v{vLANE}")
E(f"s_lshr_b32 s4, {sHI}, 3")
E(f"s_and_b32 s5, {sHI}, 7")
def lin(dst,base,terms):
    E(f"s_mov_b32 {dst}, {base:#x}")
    for r,sh in terms:
        E(f"s_lshl_b32 {sT2}, {r}, {sh}"); E(f"s_add_u32 {dst}, {dst}, {sT2}")
def roles():
    E(f"s_lshl_b32 {sETA}, s4, 3"); E(f"s_add_u32 {sETA}, {sETA}, {sLO}")
    E(f"s_add_u32 {sT}, {sHI}, 1"); E(f"s_and_b32 {sT}, {sT}, 3"); E(f"s_and_b32 {sT2}, {sHI}, 28"); E(f"s_add_u32 s6, {sT}, {sT2}")
    E("s_cmp_lt_u32 s6, 28"); E(f"s_cselect_b32 {sA1}, 1, 0"); E("s_lshl_b32 s6, s6, 3"); E(f"s_add_u32 s6, s6, {sLO}")
    E(f"s_xor_b32 {sT}, {sT}, 2"); E(f"s_add_u32 {sT2}, {sT2}, 4"); E(f"s_and_b32 {sT2}, {sT2}, 28"); E(f"s_add_u32 {sT}, {sT}, {sT2}")
    E(f"s_mul_i32 s7, {sLO}, 28"); E(f"s_add_u32 s7, s7, {sT}"); E(f"s_lshl_b32 {sT2}, {sT}, 3"); E(f"s_add_u32 {sT2}, {sT2}, {sLO}")
    E(f"s_cmp_lt_u32 {sT}, 28"); E(f"s_cselect_b32 {sA2}, 1, 0"); E(f"s_cselect_b32 s7, s7, {sT2}")
    E(f"s_mov_b32 {sLAY}, 0"); E(f"s_mov_b32 {sBUD}, 40000")
CE=int(opts.get('ce',0))
def x_addr(T=108,vOW=147):
    E(f"v_and_b32 v{T}, 7, v{vN}"); E(f"v_lshrrev_b32 v{T+1}, 3, v{vN}")
    E(f"v_lshlrev_b32 v{vOW}, 11, v{T}"); E(f"v_lshl_add_u32 v{vOW}, v{vG}, 3, v{vOW}")
    lin(sT,0,[(sLO,8),(sW,6)]); E(f"v_add_u32 v{vOW}, {sT}, v{vOW}")
def x_load(T=108,vOW=147):
    E(f"buffer_load_dwordx2 v[{T+8}:{T+9}], v{vOW}, {SX}, 0 offen"); E(f"buffer_load_dwordx2 v[{T+10}:{T+11}], v{vOW}, {SX}, 0 offen offset:32")
def sm_addr(T=108):
    E(f"v_lshlrev_b32 v{T+2}, 4, v{vN}"); lin(sT,QP+0x80000,[("s2",8)]); E(f"v_add_u32 v{T+3}, {sT}, v{T+2}")
    setexec(0xFF0000,0); E(f"v_add_u32 v{T+3}, {S['pQST']}, v{T+2}")
    setexec(0,0xFF); E(f"v_add_u32 v{T+3}, {S['pAST']}, v{T+2}")
def lin1():
    lin(S['pQP'],QP,[("s2",11)]); lin(S['pAP'],AP,[("s4",17),(sLO,14),("s5",11)]); lin(S['pAST'],AST,[("s4",13),(sLO,10),("s5",7)]); lin(S['pQST'],QST,[("s2",7)])
if CE:
    E("s_cmp_lt_u32 s3, 4"); E("s_cbranch_scc1 L_wq")
    x_addr()
    if CE==2: E("s_waitcnt lgkmcnt(0)"); srd(SX,80,16384); x_load()
    for i in range(4): E(f"v_mov_b32 v{i}, -1")
    lin1(); sm_addr(); fullexec()
    if CE==1: E("s_waitcnt lgkmcnt(0)"); srd(SX,80,16384); x_load()
    E(f"s_cmp_lg_u32 {sW}, 1"); E("s_cbranch_scc1 L_common")
    srd(WS,100,WS_REC)
    for i in range(2): E(f"buffer_store_dwordx4 v[0:3], v{vL16}, {WS}, {S['pQP']} offen offset:{i*1024} sc1")
    setexec(0xFFFFFF,0xFF); E(f"buffer_store_dwordx4 v[0:3], v111, {WS}, 0 offen sc1"); fullexec()
    for i in range(2): E(f"buffer_store_dwordx4 v[0:3], v{vL16}, {WS}, {S['pAP']} offen offset:{i*1024} sc1")
    E("s_branch L_common")
    L("L_wq"); E("s_waitcnt lgkmcnt(0)"); srd(SWQ,86,1024*4096*2)
else:
    roles(); E("s_waitcnt lgkmcnt(0)"); srd(SWQ,86,1024*4096*2)
    E("s_cmp_ge_u32 s3, 4"); E("s_cbranch_scc1 L_common")
def tile_voff(v,stride):
    E(f"v_lshrrev_b32 v{v}, 2, v{vLANE}"); E(f"v_mul_u32_u24 v{v}, {stride}, v{v}")
    E(f"v_and_b32 v{v+1}, 3, v{vLANE}"); E(f"v_lshl_add_u32 v{v}, v{v+1}, 4, v{v}")
    E(f"s_lshl_b32 {sT2}, {sW}, 6"); E(f"v_add_u32 v{v}, {sT2}, v{v}")
SWZ=int(opts.get('swz',0))
def swz_fix():
    if SWZ==1:
        E(f"s_bfe_u32 {sT2}, {sT}, 0x20008"); E(f"s_sub_u32 {sT2}, {sW}, {sT2}"); E(f"s_mul_i32 {sT2}, {sT2}, 192"); E(f"s_add_u32 {sT}, {sT}, {sT2}")
    if SWZ==2:
        E(f"s_bfe_u32 {sT2}, {sT}, 0x10008"); E(f"s_lshl_b32 {sT2}, {sT2}, 7"); E(f"s_sub_u32 {sT}, {sT}, {sT2}")
        E(f"s_lshr_b32 {sT2}, {sW}, 1"); E(f"s_lshl_b32 {sT2}, {sT2}, 7"); E(f"s_add_u32 {sT}, {sT}, {sT2}")
def tile_loads(dst,v,srdn,step):
    if step>4096: swz_fix()
    for i in range(8):
        E(f"buffer_load_dwordx4 {vr(dst+4*i,4)}, v{v}, {srdn}, {sT} offen"+(" nt" if NT and (int(opts.get('ntm','63'))>>(dst//32))&1 else ""))
        if i<7: E(f"s_add_u32 {sT}, {sT}, {step}")
RWQ,RK,RV,RWO,RW1,RW2,RB,RD=0,32,64,96,128,160,192,208
def ld_wq():
    tile_voff(RD,8192); E(f"s_lshl_b32 {sT}, {sLO}, 20"); E(f"s_lshl_b32 {sT2}, {sHI}, 8"); E(f"s_add_u32 {sT}, {sT}, {sT2}")
    tile_loads(RWQ,RD,SWQ,16*8192)
ld_wq()
L("L_common")
E(f"s_mov_b32 s1, {EPO:#x}"); E("s_load_dword s0, s[100:101], s1")
if CE: roles()
srd(WS,100,WS_REC); srd(SX,80,16384); srd(SOUT,96,16384)
E("s_cmp_ge_u32 s3, 4"); E("s_cbranch_scc1 L_common2")
srd(SK,82,8*4*4096*128*2); srd(SV,84,8*4*4096*128*2); srd(SWO,88,4096*1024*2); srd(SW1,92,1024*3584*2); srd(SW2,94,3584*1024*2)
def kv_base():
    lin(sT,3072*256,[(sLO,22),("s4",20),("s5",15)])
def ld_k():
    kv_base(); E(f"s_lshl_b32 {sT2}, {sW}, 13"); E(f"s_add_u32 {sT}, {sT}, {sT2}")
    tile_loads(RK,vL16,SK,1024)
def ld_v():
    tile_voff(RD+2,256); kv_base(); tile_loads(RV,RD+2,SV,16*256)
def ld_wo():
    tile_voff(RD+4,2048); lin(sT,0,[(sETA,18),("s5",8)]); E(f"s_xor_b32 {sT}, {sT}, 0x200"); tile_loads(RWO,RD+4,SWO,16*2048)
def inact(flag,v):
    E(f"s_cmp_eq_u32 {flag}, 1"); E(f"s_cselect_b32 {sT}, {sT}, 0"); E(f"s_cselect_b32 {sT2}, 0, 0x40000000"); E(f"v_or_b32 v{v}, {sT2}, v{v}")
def ld_w1():
    tile_voff(RD+6,7168); E(f"s_mul_i32 {sT}, {sLO}, {128*7168}"); E(f"s_lshr_b32 {sT2}, s6, 3"); E(f"s_lshl_b32 {sT2}, {sT2}, 8"); E(f"s_add_u32 {sT}, {sT}, {sT2}")
    inact(sA1,RD+6); tile_loads(RW1,RD+6,SW1,16*7168)
def ld_w2():
    tile_voff(RD+4,2048); E(f"s_lshr_b32 {sT}, s7, 3"); E(f"s_lshl_b32 {sT}, {sT}, 18"); E(f"s_and_b32 {sT2}, s7, 7"); E(f"s_lshl_b32 {sT2}, {sT2}, 8"); E(f"s_add_u32 {sT}, {sT}, {sT2}"); inact(sA2,RD+4); tile_loads(RW2,RD+4,SW2,16*2048)
sched={0:[[ld_k,ld_v,ld_wo,ld_w1,ld_w2],[],[],[],[]],
       1:[[ld_k,ld_v],[ld_wo],[ld_w1],[ld_w2],[]],
       2:[[ld_k],[ld_v],[ld_wo],[ld_w1],[ld_w2]],
       3:[[ld_k,ld_v],[ld_wo,ld_w1],[ld_w2],[],[]],4:[[],[],[],[],[]]}[4]
order=['wq']; names={ld_k:'k',ld_v:'v',ld_wo:'wo',ld_w1:'w1',ld_w2:'w2'}
q=['wq']*8
def issue(pt):
    for f in sched[pt]:
        f(); q.extend([names[f]]*8)
def iss(f):
    f(); q.extend([names[f]]*8)
NB={t:int(c) for t,c in zip("aofq",opts.get('nb','000'))}
def release(tag,at):
    m=NB.get(tag,0) if tag else 0
    if m==0: return
    if (m==3 and at==0) or (m==1 and at==1): E("s_barrier")
    if (m==2 and at==1) or (m==4 and at==0) or (m==5 and at==5):
        if tag=="f": E("s_waitcnt vmcnt(0)")
        else:
            last=max(i for i,x in enumerate(q) if x=='st'); E(f"s_waitcnt vmcnt({len(q)-1-last})")
        E("s_barrier")
def ack(tag=None):
    if tag: E(f"s_cmp_eq_u32 {sLAY}, 0"); E(f"s_cbranch_scc1 L_na_{tag}")
    if int(opts.get('ak',1)): E("s_waitcnt vmcnt(0)")
    ad=int(opts.get('ad'+(tag or '2'),opts.get('ad',0)))
    if ad: E(f"s_sleep {ad}")
    late=tag and NB.get(tag,0)
    if tag and not late: L(f"L_na_{tag}")
    E("s_barrier")
    if late: L(f"L_na_{tag}")
def wait_for(nm):
    last=max(i for i,x in enumerate(q) if x==nm); n=len(q)-1-last
    E(f"s_waitcnt vmcnt({n})")
    stamp2({'wq':11,'clr':12,'k':13,'v':14,'wo':15,'w1':16,'w2':17,'c1':18}[nm])
EXP=opts.get('exp','')
SC=int(opts.get('sc',0)); YB=int(opts.get('yb',1)) or SC in (5,7,8)
if SC in (1,2) and not EXP: iss(ld_k)
L("L_common2")
lin(S['pQP'],QP,[("s2",11)]); lin(S['pAP'],AP,[("s4",17),(sLO,14),("s5",11)]); lin(S['pAST'],AST,[("s4",13),(sLO,10),("s5",7)])
lin(S['pOP'],OP,[("s5",16),(sETA,11)]); E(f"s_xor_b32 {S['pOP']}, {S['pOP']}, 0x20000"); lin(S['pF1'],F1P,[("s6",11)])
E(f"s_lshr_b32 {sC0}, s7, 3"); E(f"s_and_b32 {sC1}, s7, 7"); lin(S['pF2'],F2P,[(sC1,16),(sC0,11)])
lin(S['pQST'],QST,[("s2",7)]); lin(S['pF1ST'],F1ST,[("s6",7)])
if STAMP:
    for i in range(20): E(f"s_mov_b32 s{STS+i}, 0")
stamp(0)
if EXP:
    E("s_cmp_ge_u32 s3, 4"); E("s_cbranch_scc1 L_fin")
    E("s_waitcnt vmcnt(0)"); stamp(1)
    for i,f in enumerate([ld_k,ld_v,ld_wo,ld_w1,ld_w2,ld_wq,ld_k]):
        f(); E("s_waitcnt vmcnt(0)"); stamp(2+i)
    E("s_branch L_fin")
    for nm in ('k','v','wo','w1','w2'): q.extend([nm]*8)
vEP=248
E("s_cmp_lt_u32 s3, 4"); E("s_cbranch_scc1 L_wt")
sec('wt'); L("L_wt")
E(f"s_lshl_b32 {sT}, {sW}, 6"); E(f"v_lshl_add_u32 v249, v{vG}, 4, {sT}")
E(f"s_lshl_b32 {sT}, {sW}, 9"); E(f"v_lshl_add_u32 v{vAQ}, v{vN}, 6, {sT}"); E(f"v_lshl_add_u32 v{vAQ}, v{vG}, 4, v{vAQ}"); E(f"v_lshl_add_u32 v{vAL}, v{vG}, 7, {sT}"); E(f"v_lshl_add_u32 v{vAL}, v{vN}, 4, v{vAL}")
E(f"s_mul_i32 {sT}, s6, 1792"); E(f"s_sub_u32 {sT}, {F1CS-F1P:#x}, {sT}")
setexec(0x01000100,0x01000100); E(f"v_add_u32 v{vAL}, {sT}, v249")
E(f"s_mul_i32 {sT}, s2, 1792"); E(f"s_sub_u32 {sT}, 0x80000, {sT}"); E(f"v_add_u32 v{vAQ}, {sT}, v249"); fullexec()
def flag_store(word):
    lin(sT,FLG+word*4,[("s2",7)])
    setexec(1,0); E(f"buffer_store_dword v{vEP}, off, {WS}, {sT} sc1"); fullexec()
M8=(0x00FF00FF,0x00FF00FF); M9=(0x01FF01FF,0x01FF01FF)
def bump(keys):
    for k in keys: E(f"s_add_u32 {S[k]}, {S[k]}, {LS:#x}")
def l0only(tag):
    E(f"s_cmp_lg_u32 {sLAY}, 0"); E(f"s_cbranch_scc1 L_skip_{tag}")
def bounce(nm,R,natural,nxt=None,rel=None):
    t=RD+8
    E(f"s_mul_i32 {sT}, {sW}, {BSZ}"); E(f"s_add_u32 {sT}, {sT}, {BOUNCE}")
    E(f"v_add_u32 v{t}, {sT}, v{vL16}")
    E(f"v_lshrrev_b32 v{t+1}, 2, v{vN}"); E(f"v_lshl_add_u32 v{t+1}, v{vG}, {3 if natural else 2}, v{t+1}")
    E(f"v_lshlrev_b32 v{t+1}, 6, v{t+1}"); E(f"v_and_b32 v{t+2}, 3, v{vLANE}"); E(f"v_lshl_add_u32 v{t+1}, v{t+2}, 4, v{t+1}")
    E(f"v_add_u32 v{t+1}, {sT}, v{t+1}")
    wait_for(nm)
    if nm=='v' and YB: E("s_barrier")
    if nxt: iss(nxt)
    for i in range(8): E(f"ds_write_b128 v{t}, {vr(R+4*i,4)} offset:{i*1024}")
    E("s_waitcnt lgkmcnt(0)")
    release(rel,0)
    for tt in range(2):
        for k in range(4):
            for u in range(2):
                E(f"ds_read_b64_tr_b16 {vr(R+16*tt+4*k+2*u,2)}, v{t+1} offset:{k*2048+u*(256 if natural else 1024)+8*tt}")
    E("s_waitcnt lgkmcnt(0)")
    release(rel,1)
def bounce_k():
    t=RD+8
    E(f"s_mul_i32 {sT}, {sW}, {BSZ}"); E(f"s_add_u32 {sT}, {sT}, {BOUNCE}")
    E(f"v_mul_u32_u24 v{t}, 272, v{vG}"); E(f"v_lshl_add_u32 v{t}, v{vN}, 4, v{t}"); E(f"v_add_u32 v{t}, {sT}, v{t}")
    E(f"v_mul_u32_u24 v{t+1}, 272, v{vN}"); E(f"v_lshl_add_u32 v{t+1}, v{vG}, 4, v{t+1}"); E(f"v_add_u32 v{t+1}, {sT}, v{t+1}")
    VE=int(opts.get('ve',1))
    if NB.get('q',0)==5: release('q',5)
    if VE: iss(ld_v)
    if NB.get('q',0)==6: E("s_barrier")
    wait_for('k')
    if SC in (0,7,8) and not VE: iss(ld_v)
    for i in range(8): E(f"ds_write_b128 v{t}, {vr(RK+4*i,4)} offset:{i*1088}")
    E("s_waitcnt lgkmcnt(0)")
    release('q',0)
    for tt in range(2):
        for k in range(4): E(f"ds_read_b128 {vr(RK+16*tt+4*k,4)}, v{t+1} offset:{tt*16*272+k*64}")
    E("s_waitcnt lgkmcnt(0)")
    release('q',1)
def read_b(base):
    for k in range(4): E(f"ds_read_b128 {vr(RB+4*k,4)}, v{vL16} offset:{base+k*1024}")
def mm(R):
    for k in range(4):
        E(f"s_waitcnt lgkmcnt({3-k})" if not STAMP else "s_waitcnt lgkmcnt(0)")
        for tt in range(2): mfma(RD+4*tt,R+16*tt+4*k,RB+4*k,None if k==0 else RD+4*tt)
def pack_store(src,va,so,mask):
    for i in range(4): E(f"v_cvt_pk_bf16_f32 v{RD+8+i}, v{src+2*i}, v{src+2*i+1}")
    if mask is M9: E(f"s_mov_b32 exec_lo, {sC0}"); E(f"s_mov_b32 exec_hi, {sC0}")
    else: setexec(*mask)
    E(f"buffer_store_dwordx4 {vr(RD+8,4)}, v{va}, {WS}, {so} offen sc1"); fullexec(); q.append('st')
def gemm_phase(R,p,va,so,mask):
    read_b(OPB[p]); mm(R); nop(8); pack_store(RD,va,so,mask)
E(f"s_mov_b32 {sC0}, 0x01FF01FF"); E("s_waitcnt lgkmcnt(0)")
if SC==5: E("s_barrier"); iss(ld_k)
L("L_wloop")
l0only("wq"); bounce('wq',RWQ,False,ld_v if SC in (1,2,5) else ld_k); L("L_skip_wq")
E("s_barrier")
stamp(1)
gemm_phase(RWQ,0,vAQ,S['pQP'],M9)
stamp(2)
ack("q")
l0only("k"); bounce_k(); bounce('v',RV,False,ld_wo if SC!=1 else None); L("L_skip_k")
E("s_barrier")
stamp(3)
def at_bar(tag,f):
    l0only(tag); iss(f); L("L_skip_"+tag)
def l1clear():
    for i in range(4): E(f"v_mov_b32 v{240+i}, -1")
    E(f"s_lshl_b32 {sT}, s6, 2"); E(f"s_add_u32 {sT}, {sT}, {sW}"); E(f"s_mul_i32 {sT}, {sT}, 3072"); E(f"s_add_u32 {sT}, {sT}, {LS:#x}")
    E(f"v_mov_b32 v244, v{vL16}"); inact(sA1,244)
    for i in range(3): E(f"buffer_store_dwordx4 v[240:243], v244, {WS}, {sT} offen offset:{i*1024} sc1"); q.append('c1')
read_b(OPB[1])
if SC==1: at_bar("iwo",ld_wo)
if SC in (2,5,7,8): at_bar("iw1",ld_w1)
mm(RK);
E(f"s_mov_b32 {sT}, 0x3e0293ee")
nop(7)
d=RD; t=RD+8
E(f"v_max3_f32 v{t}, v{d}, v{d+1}, v{d+2}"); E(f"v_max3_f32 v{t+1}, v{d+3}, v{d+4}, v{d+5}")
E(f"v_max3_f32 v{t}, v{t}, v{d+6}, v{d+7}"); E(f"v_max_f32 v{t}, v{t}, v{t+1}")
def xrow(op,a,b):
    for sw in ("16","32"):
        E(f"v_mov_b32 v{b}, v{a}"); nop(2); E(f"v_permlane{sw}_swap_b32 v{a}, v{b}"); E(f"{op} v{a}, v{a}, v{b}")
xrow("v_max_f32",t,t+1)
E(f"v_mul_f32 v{t}, {sT}, v{t}")
for i in range(8): E(f"v_fma_f32 v{d+i}, v{d+i}, {sT}, -v{t}")
for i in range(8): E(f"v_exp_f32 v{d+i}, v{d+i}")
nop(1)
for i in range(4): E(f"v_cvt_pk_bf16_f32 v{t+4+i}, v{d+2*i}, v{d+2*i+1}")
E(f"s_lshl_b32 {sT}, {sW}, 10"); E(f"v_add_u32 v{t+2}, {sT}, v{vL16}")
E(f"ds_write_b128 v{t+2}, {vr(t+4,4)} offset:{PB}")
E(f"v_add_f32 v{d}, v{d}, v{d+1}"); E(f"v_add_f32 v{d+2}, v{d+2}, v{d+3}"); E(f"v_add_f32 v{d+4}, v{d+4}, v{d+5}"); E(f"v_add_f32 v{d+6}, v{d+6}, v{d+7}")
E(f"v_add_f32 v{d}, v{d}, v{d+2}"); E(f"v_add_f32 v{d+4}, v{d+4}, v{d+6}"); E(f"v_add_f32 v{t+1}, v{d}, v{d+4}")
xrow("v_add_f32",t+1,t+3)
E(f"s_lshl_b32 {sT}, {sW}, 3"); E(f"v_lshl_add_u32 v{t+2}, v{vN}, 5, {sT}")
setexec(0xFFFF,0); E(f"ds_write_b64 v{t+2}, {vr(t,2)} offset:{SMB}"); fullexec()
E("s_waitcnt lgkmcnt(0)")
E("s_barrier")
E(f"v_lshlrev_b32 v249, 5, v{vN}")
read_b(PB)
E(f"ds_read_b128 v[240:243], v249 offset:{SMB}"); E(f"ds_read_b128 v[244:247], v249 offset:{SMB+16}")
for k in range(4):
    E(f"s_waitcnt lgkmcnt({5-k})" if not STAMP else "s_waitcnt lgkmcnt(0)")
    for tt in range(2): mfma(RD+8*k+4*tt,RV+16*tt+4*k,RB+4*k,None)
E("s_waitcnt lgkmcnt(0)")
E("v_max3_f32 v248, v240, v242, v244"); E("v_max_f32 v248, v248, v246")
for i in range(4): E(f"v_sub_f32 v{240+2*i}, v{240+2*i}, v248")
for i in range(4): E(f"v_exp_f32 v{240+2*i}, v{240+2*i}")
nop(1)
E("v_mul_f32 v249, v240, v241")
for i in range(1,4): E(f"v_fmac_f32 v249, v{240+2*i}, v{241+2*i}")
for i in range(8): E(f"v_mul_f32 v{RD+i}, v240, v{RD+i}")
for k in range(1,4):
    for i in range(8): E(f"v_fmac_f32 v{RD+i}, v{240+2*k}, v{RD+8*k+i}")
pack_store(RD,vAQ,S['pAP'],M8)
E(f"s_lshl_b32 {sT}, {sW}, 30"); E(f"v_lshl_add_u32 v240, v{vN}, 3, {sT}")
setexec(0xFF,0)
E(f"buffer_store_dwordx2 v[248:249], v240, {WS}, {S['pAST']} offen sc1"); fullexec(); q.append('st')
stamp(4)
ack("a")
l0only("wo")
JIT=int(opts.get('jit',0)); BOTH=int(opts.get('both',0))
if BOTH:
    if BOTH==2: l1clear()
    iss(ld_w1); iss(ld_w2)
    if BOTH==1: l1clear()
    bounce('wo',RWO,True); bounce('w1',RW1,False)
elif JIT:
    if 'c1e' in opts: l1clear()
    bounce('wo',RWO,True,ld_w1,'a')
    if JIT==2: wait_for('w1'); iss(ld_w2)
elif SC==0: bounce('wo',RWO,True,ld_w1); bounce('w1',RW1,False,None if 'w2d' in opts else ld_w2)
elif SC in (7,8): bounce('wo',RWO,True); bounce('w1',RW1,False,ld_w2 if SC==7 else None)
else:
    if SC==5: iss(ld_w2)
    l1clear(); bounce('wo',RWO,True)
if SC in (2,5): bounce('w1',RW1,False)
L("L_skip_wo")
E("s_barrier")
stamp(5)
if SC==1: at_bar("iw1",ld_w1)
if SC in (2,8) or opts.get('w2d')=='1': at_bar("iw2",ld_w2)
gemm_phase(RWO,2,vAL,S['pOP'],M8)
ack("o")
l0only("w1")
if opts.get('w2d')=='2': iss(ld_w2)
if SC in (0,7,8) and BOTH in (0,3) and 'c1e' not in opts: l1clear()
if JIT:
    if JIT==3: E("s_barrier")
    bounce('w1',RW1,False,ld_w2 if JIT!=2 else None,'o'); wait_for('c1')
elif SC==1: bounce('w1',RW1,False)
else: bounce('w2',RW2,False); E("s_waitcnt vmcnt(0)"); stamp2(18)
L("L_skip_w1")
E("s_barrier")
stamp(6)
if SC==1: at_bar("iw2",ld_w2)
E(f"s_cmp_eq_u32 {sA1}, 0"); E("s_cbranch_scc1 L_nof1")
gemm_phase(RW1,3,vAL,S['pF1'],M9); q.pop()
L("L_nof1")
if SC==1 or JIT: ack("f"); l0only("w2"); bounce('w2',RW2,False,None,'f'); L("L_skip_w2")
else: ack()
E("s_barrier")
stamp(7)
E(f"s_cmp_eq_u32 {sA2}, 0"); E("s_cbranch_scc1 L_nof2")
gemm_phase(RW2,4,vAL,S['pF2'],M8)
L("L_nof2")
stamp(8)
ack()
bump(['pQP','pAP','pAST','pOP','pF1','pF2']); E(f"s_mov_b32 {sC0}, 0x00FF00FF")
E(f"s_add_u32 {sLAY}, {sLAY}, 1"); E(f"s_cmp_lt_u32 {sLAY}, 2"); E("s_cbranch_scc1 L_wloop")
E("s_branch L_fin")
sec('cm')
G=0; X=64; MP=72; A1=80; AG=88; D0=92; D1=96; D2=100; D3=104; T=108; AW=160
vG1,vCS,vST,vG3,vAST,vLW,vSTa,vOW,vONE=140,141,142,143,144,145,146,147,148
if CE: E(f"s_cmp_eq_u32 {sW}, 1"); E("s_cbranch_scc1 L_nsm")
else:
    E(f"v_and_b32 v{T}, 7, v{vN}"); E(f"v_lshrrev_b32 v{T+1}, 3, v{vN}")
    E(f"v_lshlrev_b32 v{vOW}, 11, v{T}"); E(f"v_lshl_add_u32 v{vOW}, v{vG}, 3, v{vOW}")
    lin(sT,0,[(sLO,8),(sW,6)]); E(f"v_add_u32 v{vOW}, {sT}, v{vOW}")
    E(f"buffer_load_dwordx2 v[{T+8}:{T+9}], v{vOW}, {SX}, 0 offen"); E(f"buffer_load_dwordx2 v[{T+10}:{T+11}], v{vOW}, {SX}, 0 offen offset:32")
    for i in range(4): E(f"v_mov_b32 v{G+i}, -1")
    E(f"s_cmp_lg_u32 {sW}, 1"); E("s_cbranch_scc1 L_cl2")
    for i in range(2): E(f"buffer_store_dwordx4 {vr(G,4)}, v{vL16}, {WS}, {S['pQP']} offen offset:{i*1024} sc1")
    E(f"v_lshlrev_b32 v{T+2}, 4, v{vN}"); lin(sT,QP+0x80000,[("s2",8)]); E(f"v_add_u32 v{T+3}, {sT}, v{T+2}")
    setexec(0xFF0000,0); E(f"v_add_u32 v{T+3}, {S['pQST']}, v{T+2}")
    setexec(0,0xFF); E(f"v_add_u32 v{T+3}, {S['pAST']}, v{T+2}")
    setexec(0xFFFFFF,0xFF); E(f"buffer_store_dwordx4 {vr(G,4)}, v{T+3}, {WS}, 0 offen sc1"); fullexec()
L("L_cl2")
E(f"s_mov_b32 {sT}, {S['pAP']}")
E(f"s_cmp_eq_u32 {sW}, 0"); E(f"s_cselect_b32 {sT}, {S['pOP']}, {sT}")
E(f"s_cmp_eq_u32 {sW}, 2"); E(f"s_cselect_b32 {sT}, {S['pF1']}, {sT}")
E(f"s_cmp_eq_u32 {sW}, 3"); E(f"s_cselect_b32 {sT}, {S['pF2']}, {sT}")
for i in range(2): E(f"buffer_store_dwordx4 {vr(G,4)}, v{vL16}, {WS}, {sT} offen offset:{i*1024} sc1")
E(f"s_bitcmp1_b32 {sW}, 0"); E("s_cbranch_scc1 L_nsm")
lin(sT,F1CS,[("s6",8)])
E(f"s_cmp_eq_u32 {sW}, 0"); E(f"s_cselect_b32 {sT}, {S['pF1ST']}, {sT}"); E(f"s_cselect_b32 exec_lo, 0xff, -1"); E("s_and_b32 exec_lo, exec_lo, 0xffff"); E("s_mov_b32 exec_hi, 0")
E(f"buffer_store_dwordx4 {vr(G,4)}, v{vL16}, {WS}, {sT} offen sc1")
L("L_nsm"); fullexec(); stamp2(12)
if SC==5: E("s_barrier")
E(f"v_lshlrev_b32 v{vSTa}, 3, v{T}"); setexec(0xFFFFFFFF,0); E(f"v_add_u32 v{vSTa}, 4, v{vSTa}")
fullexec()
lin(S['gF2'],(F2P-LS)&0xffffffff,[(sLO,16)]); lin(S['gOP'],OP,[(sLO,16)]); lin(S['gQP'],QP,[("s4",17),(sLO,6)]); lin(S['gQCS'],QP+8*65536,[("s4",14)])
lin(S['gQST'],QST,[(sHI,10),(sLO,3)]); lin(S['gAP'],AP,[("s4",17),(sLO,6)]); lin(S['gAST'],AST,[("s4",13),(sLO,3)])
E(f"s_lshr_b32 {sC0}, s7, 3")
lin(S['gF1'],F1P,[(sC0,14)]); lin(S['gF1CS'],F1CS,[(sC0,11)]); lin(S['gF1ST'],F1ST,[(sC0,10)])
E(f"v_and_b32 v{T+3}, 2, v{vG}"); E(f"v_add_u32 v{T+3}, v{T+3}, v{T+1}")
E(f"v_and_b32 v{T+4}, 1, v{vG}")
E(f"s_lshl_b32 {sT}, {sW}, 9"); E(f"v_lshl_add_u32 v{vG1}, v{T+3}, 11, {sT}"); E(f"v_lshl_add_u32 v{vG1}, v{T+4}, 7, v{vG1}"); E(f"v_lshl_add_u32 v{vG1}, v{T}, 4, v{vG1}")
E(f"s_lshl_b32 {sT}, {sW}, 6"); E(f"v_lshl_add_u32 v{vCS}, v{T+3}, 8, {sT}"); E(f"v_lshl_add_u32 v{vCS}, v{T+4}, 4, v{vCS}")
E(f"v_lshl_add_u32 v{vST}, v{vG}, 1, v{T+1}"); E(f"v_lshlrev_b32 v{vST}, 7, v{vST}")
E(f"v_lshl_add_u32 v149, v{T}, 3, v{vST}")
E(f"s_lshl_b32 {sT}, {sW}, 12"); E(f"v_lshl_add_u32 v{vG3}, v{vG}, 9, {sT}"); E(f"v_lshl_add_u32 v{vG3}, v{vN}, 4, v{vG3}")
E(f"s_lshl_b32 {sT}, {sW}, 11"); E(f"v_lshl_add_u32 v{vAST}, v{T+1}, 10, {sT}"); E(f"v_lshl_add_u32 v{vAST}, v{vG}, 8, v{vAST}")
E(f"s_lshl_b32 {sT}, {sW}, 15"); E(f"v_lshl_add_u32 v151, v{vG}, 12, {sT}"); E(f"v_lshrrev_b32 v152, 2, v{vN}"); E("v_lshl_add_u32 v151, v152, 9, v151")
E(f"v_and_b32 v152, 3, v{vN}"); E("v_lshl_add_u32 v151, v152, 4, v151"); E("v_add_u32 v152, 0x4000, v151")
E(f"s_lshl_b32 {sT}, {sW}, 5"); E(f"v_lshl_add_u32 v{vLW}, v{vG}, 3, {sT}"); E(f"v_lshl_add_u32 v{vLW}, v{vN}, 8, v{vLW}")
E(f"s_lshl_b32 {sT}, {sW}, 10"); E(f"v_add_u32 v150, {sT}, v{vL16}")
lin(sC0,0,[("s4",13),(sW,11)]); E(f"v_lshl_add_u32 v191, v{vN}, 7, {sC0}")
E(f"s_lshl_b32 {sC0}, {sHI}, 10"); setexec(0xFF0000,0); E(f"v_lshl_add_u32 v191, v{vN}, 7, {sC0}"); fullexec()
E(f"v_mov_b32 v{vONE}, 1.0"); lin(sC0,4,[(sW,13)]); E(f"v_lshl_add_u32 v188, v{vLANE}, 7, {sC0}")
E(f"v_and_b32 v{T+5}, 1, v{vN}"); E(f"v_lshlrev_b32 v{T+5}, 4, v{T+5}"); E(f"v_mov_b32 v{T+6}, 0xffff"); E(f"v_lshlrev_b32 v{T+6}, v{T+5}, v{T+6}")
E(f"v_lshrrev_b32 v{T+5}, 1, v{vN}")
for i in range(8):
    E(f"v_cmp_eq_u32 vcc, {i}, v{T+5}"); nop(2); E(f"v_cndmask_b32 v{MP+i}, 0, v{T+6}, vcc")
for i in range(8): E(f"v_and_b32 v{A1+i}, 0x3f803f80, v{MP+i}")
E(f"v_cmp_eq_u32 vcc, 0, v{T+4}"); nop(2)
for i in range(4): E(f"v_cndmask_b32 v{AG+i}, v{A1+4+i}, v{A1+i}, vcc")
stamp2(13)
E("s_waitcnt vmcnt(5)"); E(f"s_cmp_eq_u32 {sW}, 1"); E("s_cbranch_scc1 L_x0p")
E("s_waitcnt vmcnt(3)"); E(f"s_cmp_lg_u32 {sW}, 3"); E("s_cbranch_scc1 L_x0p")
E("s_waitcnt vmcnt(2)"); L("L_x0p"); stamp2(14); E("s_waitcnt lgkmcnt(0)"); E("s_add_u32 s0, s0, 1"); E(f"v_mov_b32 v{vEP}, s0")
uid=[0]
def gld(dst,va,so,off,sel):
    if sel:
        uid[0]+=1
        E(f"v_max3_u32 v190, v{dst}, v{dst+1}, v{dst+2}"); E(f"v_max_u32 v190, v190, v{dst+3}"); E("v_cmp_eq_u32 vcc, -1, v190")
        E("s_mov_b64 exec, vcc"); E(f"s_cbranch_execz L_sl{uid[0]}")
    E(f"buffer_load_dwordx4 {vr(dst,4)}, v{va}, {WS}, {so} offen offset:{off} sc1")
    if sel: L(f"L_sl{uid[0]}"); fullexec()
def poll_end(tag,regs,loads):
    E(f"v_cmp_u_f32 {sP}, v{regs[0]}, v{regs[1]}")
    if len(regs)>2:
        E(f"v_cmp_u_f32 vcc, v{regs[2]}, v{regs[3]}"); E(f"s_or_b64 {sP}, {sP}, vcc")
    E(f"s_cmp_lg_u64 {sP}, 0"); E(f"s_cbranch_scc1 L_rt_{tag}")
    old=sec('rt'); L(f"L_rt_{tag}")
    E(f"s_sub_u32 {sBUD}, {sBUD}, 1"); E(f"s_cmp_lt_i32 {sBUD}, 0"); E(f"s_cbranch_scc1 L_pd_{tag}")
    if int(opts.get('slp',0)): E(f"s_sleep {opts['slp']}")
    loads(True); E("s_waitcnt vmcnt(0)"); E(f"s_branch L_pm_{tag}"); sec(old)
    L(f"L_pd_{tag}")
def ror8(r,n):
    for i in range(n): E(f"v_add_f32_dpp v{r+i}, v{r+i}, v{r+i} row_ror:8 row_mask:0xf bank_mask:0xf")
def g1(tag,key,ng):
    def loads(sel):
        E(f"s_mov_b32 {sT}, {S[key]}")
        for i in range(ng):
            for h in range(2): gld(G+8*i+4*h,vG1,sT,h*256,sel)
            if i<ng-1: E(f"s_add_u32 {sT}, {sT}, 8192")
    loads(False)
    if tag=="o" and JIT==3: l0only("y2"); E("s_barrier"); L("L_skip_y2")
    L(f"L_pm_{tag}")
    for i in range(ng):
        for h in range(2):
            E(f"s_waitcnt vmcnt({2*ng-1-2*i-h})"); mfma(D0+4*h,AG,G+8*i+4*h,None if i==0 else D0+4*h)
    nop(8); poll_end(tag,[D0,D1],loads); ror8(D0,8)
    for i in range(8): E(f"v_add_f32 v{D0+i}, v{D0+i}, v{X+i}")
    for i in range(4): E(f"v_cvt_pk_bf16_f32 v{T+8+i}, v{D0+2*i}, v{D0+2*i+1}")
def x_out(p):
    for i in range(4):
        E(f"v_lshlrev_b32 v{X+2*i}, 16, v{T+8+i}"); E(f"v_and_b32 v{X+2*i+1}, 0xffff0000, v{T+8+i}")
    setexec(0xFF00FF00,0xFF00FF00)
    for i in range(4): E(f"v_mov_b32 v{T+8+i}, 0x3f803f80")
    fullexec()
    E(f"ds_write_b128 v150, {vr(T+8,4)} offset:{OPB[p]}"); E("s_waitcnt lgkmcnt(0)")
def gram(tag,p,key):
    for k in range(4): E(f"ds_read_b128 {vr(G+4*k,4)}, v{vL16} offset:{OPB[p]+k*1024}")
    E("s_waitcnt lgkmcnt(0)")
    for k in range(4): mfma(D0,G+4*k,G+4*k,None if k==0 else D0)
    nop(8)
    for i in range(1,4):
        setexec((1<<i)|(1<<(20+i)),0); E(f"v_mov_b32 v{D0}, v{D0+i}")
    setexec(0x00F0000F,0xFF); E(f"buffer_store_dword v{D0}, v{vSTa}, {WS}, {S[key]} offen sc1"); fullexec()
def ln_stats(r):
    ror8(D2,1); ror8(D3,1)
    E(f"s_mov_b32 {sT}, 0x3a800000")
    E(f"v_mul_f32 v{D2}, {sT}, v{D2}"); E(f"v_mul_f32 v{D3}, {sT}, v{D3}")
    E(f"v_fma_f32 v{D3}, -v{D2}, v{D2}, v{D3}"); E(f"v_max_f32 v{D3}, 0, v{D3}"); E(f"v_add_f32 v{D3}, 0x3727c5ac, v{D3}")
    E(f"v_rsq_f32 v{D3}, v{D3}")
def stat_mfma(r):
    E(f"v_mfma_f32_16x16x4_f32 {vr(D2,4)}, v{vONE}, v{r}, 0"); E(f"v_mfma_f32_16x16x4_f32 {vr(D3,4)}, v{vONE}, v{r+1}, 0")
sec('g1f')
E(f"s_cmp_lt_u32 {sLAY}, 2"); E("s_cbranch_scc1 L_nf"); E(f"s_cmp_lg_u32 {sHI}, {sW}"); E("s_cbranch_scc1 L_fin"); L("L_nf")
g1("f2",'gF2',7)
E(f"s_cmp_lt_u32 {sLAY}, 2"); E("s_cbranch_scc1 L_x0")
setexec(*M8)
E(f"buffer_store_dwordx2 v[{T+8}:{T+9}], v{vOW}, {SOUT}, 0 offen"); E(f"buffer_store_dwordx2 v[{T+10}:{T+11}], v{vOW}, {SOUT}, 0 offen offset:32")
fullexec()
sec('cm'); L("L_x0")
x_out(0)
stamp(1)
l0only("fs"); E(f"s_cmp_lg_u32 {sW}, 1"); E("s_cbranch_scc1 L_skip_fs")
E("s_waitcnt vmcnt(0)"); flag_store(0); stamp2(11); L("L_skip_fs")
E("s_barrier")
E(f"s_cmp_lg_u32 {sW}, 0"); E("s_cbranch_scc1 L_ng0"); gram("q",0,'pQST'); L("L_ng0")
stamp(7)
def flagpoll(tag,lo,hi,T=T,pre=False):
    E(f"s_mov_b32 {sT}, {FLG:#x}"); setexec(lo,hi)
    if pre: E(f"s_branch L_fc{tag}")
    L(f"L_fl{tag}")
    E(f"buffer_load_dword v{T+1}, v{T}, {WS}, {sT} offen sc1"); L(f"L_fc{tag}"); E("s_waitcnt vmcnt(0)")
    E(f"v_cmp_ne_u32 {sP}, v{vEP}, v{T+1}"); E(f"s_cmp_eq_u64 {sP}, 0"); E(f"s_cbranch_scc1 L_fd{tag}")
    E(f"s_sleep {opts.get('fs','2')}")
    E(f"s_sub_u32 {sBUD}, {sBUD}, 1"); E(f"s_cmp_gt_i32 {sBUD}, 0"); E(f"s_cbranch_scc1 L_fl{tag}")
    L(f"L_fd{tag}"); fullexec()
EP=int(opts.get('ep',0))
if EP:
    l0only("fpre"); E(f"s_mov_b32 {sT}, {FLG:#x}"); setexec(0xFFFFFF,0); E(f"buffer_load_dword v192, v191, {WS}, {sT} offen sc1"); fullexec(); L("L_skip_fpre")
E("s_barrier")
l0only("flag")
flagpoll("g",0xFFFFFF,0,191,EP)
L("L_skip_flag")
def l0delay(tag):
    if int(opts.get('l0d',0)): l0only("dl"+tag); E(f"s_sleep {opts['l0d']}"); L("L_skip_dl"+tag)
stamp(2)
CQ=176; CF=180
def ld_q(sel):
    l0only(f"cq0{sel}")
    for p in range(2):
        for i in range(2): gld(G+16+8*p+4*i,vG3,S['gQCS'],p*2048+i*256,sel)
    L(f"L_skip_cq0{sel}")
    E(f"buffer_load_dwordx2 v[{T}:{T+1}], v{vST}, {WS}, {S['gQST']} offen sc1")
    for p in range(2):
        for i in range(2): gld(G+8*p+4*i,151+p,S['gQP'],i*2048,sel)
ld_q(False)
if YB: l0only("y"); E("s_barrier"); L("L_skip_y")
L("L_pm_q")
E("s_waitcnt vmcnt(4)"); stat_mfma(T)
l0only("cq")
for c in range(4): mfma(CQ,A1+4*(c//2),G+16+4*c,None if c==0 else CQ)
L("L_skip_cq")
nop(8); ln_stats(T)
E(f"v_add_f32 v{T+2}, v{D3+1}, v{D2+1}")
for i in range(4): E(f"v_mul_f32 v{D0+i}, -v{D2}, v{CQ+i}")
nop(1)
for c in range(4):
    E(f"s_waitcnt vmcnt({3-c})"); mfma(D0,A1+4*(c//2),G+4*c,D0)
nop(8)
for i in range(4): E(f"v_mul_f32 v{D0+i}, v{D3}, v{D0+i}")
poll_end("q",[D0,T+2],ld_q)
def small_out(p):
    for i in range(2): E(f"v_cvt_pk_bf16_f32 v{T+8+i}, v{D0+2*i}, v{D0+2*i+1}")
    E(f"ds_write_b64 v{vLW}, {vr(T+8,2)} offset:{OPB[p]}"); E("s_waitcnt lgkmcnt(0)")
small_out(1)
stamp(3)
E("s_barrier")
l0only("c1")
E(f"s_cmp_lg_u32 {sW}, 1"); E("s_cbranch_scc1 L_skip_c1"); flag_store(1)
L("L_skip_c1")
E("s_barrier")
E("s_barrier")
l0delay("a")
stamp(8)
def ld_a(sel):
    l0only(f"c3{sel}"); E(f"s_mov_b32 {sT}, {FLG:#x}"); E(f"buffer_load_dword v189, v188, {WS}, {sT} offen sc1"); L(f"L_skip_c3{sel}")
    for i in range(2): E(f"buffer_load_dwordx2 {vr(T+2*i,2)}, v{vAST}, {WS}, {S['gAST']} offen offset:{i*128} sc1")
    for p in range(2):
        for i in range(2): gld(G+8*p+4*i,151+p,S['gAP'],i*2048,sel)
ld_a(False); L("L_pm_a")
E("s_waitcnt vmcnt(4)")
E(f"v_max_f32 v{T+4}, v{T}, v{T+2}"); xrow("v_max_f32",T+4,T+5)
E(f"v_sub_f32 v{T}, v{T}, v{T+4}"); E(f"v_sub_f32 v{T+2}, v{T+2}, v{T+4}"); E(f"v_exp_f32 v{T}, v{T}"); E(f"v_exp_f32 v{T+2}, v{T+2}"); nop(1)
E(f"v_cvt_pk_bf16_f32 v{T}, v{T}, v{T}"); E(f"v_cvt_pk_bf16_f32 v{T+2}, v{T+2}, v{T+2}")
for p in range(2):
    for i in range(2):
        for r in range(4): E(f"v_and_b32 v{AW+8*p+4*i+r}, v{MP+4*p+r}, v{T+2*i}")
E(f"v_and_b32 v{T}, 0xffff0000, v{T}"); E(f"v_and_b32 v{T+2}, 0xffff0000, v{T+2}")
for c in range(4):
    E(f"s_waitcnt vmcnt({3-c})"); mfma(D0,AW+4*c,G+4*c,None if c==0 else D0)
E(f"v_mul_f32 v{T+4}, v{T}, v{T+1}"); E(f"v_fmac_f32 v{T+4}, v{T+2}, v{T+3}"); xrow("v_add_f32",T+4,T+5)
E(f"v_rcp_f32 v{T+4}, v{T+4}"); nop(1)
E(f"v_readlane_b32 {sC0}, v{T+4}, 0"); E(f"v_readlane_b32 {sC1}, v{T+4}, 8"); nop(2)
E(f"v_mov_b32 v{T+4}, {sC1}"); setexec(0xFFFFFFFF,0); E(f"v_mov_b32 v{T+4}, {sC0}"); fullexec()
for i in range(4): E(f"v_mul_f32 v{D0+i}, v{T+4}, v{D0+i}")
poll_end("a",[D0,D0+1],ld_a)
small_out(2)
stamp(4)
E("s_barrier")
l0only("c2"); flagpoll("a",0xFFFFFFFF,0xFFFFFFFF,188,True); L("L_skip_c2")
E("s_barrier")
E(f"s_add_u32 {sT}, s2, {sW}"); E(f"s_add_u32 {sT}, {sT}, {sLAY}"); E(f"s_cmp_lg_u32 {sT}, 0"); E("s_cbranch_scc1 L_nep")
E(f"s_mov_b32 {sT}, {EPO:#x}"); setexec(1,0); E(f"buffer_store_dword v{vEP}, off, {WS}, {sT} sc1"); fullexec()
L("L_nep")
l0delay("o")
g1("o",'gOP',8)
x_out(3)
stamp(5)
E("s_barrier")
E(f"s_cmp_lg_u32 {sW}, 0"); E("s_cbranch_scc1 L_ng1"); E(f"s_cmp_eq_u32 {sA1}, 0"); E("s_cbranch_scc1 L_ng1"); gram("f",3,'pF1ST'); L("L_ng1")
E("s_barrier")
if SC==1 or JIT: l0delay("f")
E(f"s_cmp_eq_u32 {sA2}, 0"); E("s_cbranch_scc1 L_nog2")
E0,E1=AW,AW+4
def ld_h(sel):
    l0only(f"cf0{sel}")
    for i in range(2):
        for h in range(2): gld(G+16+8*i+4*h,vCS,S['gF1CS'],i*1024+h*32,sel)
    L(f"L_skip_cf0{sel}")
    E(f"buffer_load_dwordx2 v[{T}:{T+1}], v149, {WS}, {S['gF1ST']} offen sc1")
    E(f"s_add_u32 {sT}, {S['gF1']}, 8192")
    for i in range(2):
        for h in range(2): gld(G+8*i+4*h,vG1,S['gF1'] if i==0 else sT,h*256,sel)
ld_h(False); L("L_pm_h")
E("s_waitcnt vmcnt(4)"); stat_mfma(T)
l0only("cf")
for c in range(4): mfma(CF+4*(c%2),AG,G+16+4*c,None if c<2 else CF+4*(c%2))
L("L_skip_cf")
nop(8); ln_stats(T)
E(f"v_add_f32 v{T+2}, v{D3+1}, v{D2+1}")
for i in range(8): E(f"v_mul_f32 v{D0+i}, -v{D2}, v{CF+i}")
nop(1)
for c in range(4):
    E(f"s_waitcnt vmcnt({3-c})"); mfma(D0+4*(c%2),AG,G+4*c,D0+4*(c%2))
nop(8)
poll_end("h",[D0,D1,T+2,T+2],ld_h)
ror8(D0,8)
E(f"s_mov_b32 {sT}, 0xbfb8aa3b")
for i in range(8): E(f"v_mul_f32 v{D0+i}, v{D3}, v{D0+i}")
for i in range(8): E(f"v_mul_f32 v{E0+i}, {sT}, v{D0+i}")
for i in range(8): E(f"v_exp_f32 v{E0+i}, v{E0+i}")
for i in range(8): E(f"v_add_f32 v{E0+i}, 1.0, v{E0+i}")
for i in range(8): E(f"v_rcp_f32 v{E0+i}, v{E0+i}")
for i in range(8): E(f"v_mul_f32 v{D0+i}, v{E0+i}, v{D0+i}")
for i in range(4): E(f"v_cvt_pk_bf16_f32 v{T+8+i}, v{D0+2*i}, v{D0+2*i+1}")
E(f"ds_write_b128 v150, {vr(T+8,4)} offset:{OPB[4]}"); E("s_waitcnt lgkmcnt(0)")
L("L_nog2")
stamp(6)
E("s_barrier")
E("s_barrier")
bump(['pQST','pF1ST','gF2','gOP','gQP','gQCS','gQST','gAP','gAST','gF1','gF1CS','gF1ST'])
E(f"s_add_u32 {sLAY}, {sLAY}, 1")
sec('fin'); L("L_fin")
if STAMP:
    E(f"s_mov_b32 {sLAY}, 1"); stamp(9)
    E(f"s_mov_b32 s{STS+9}, {sBUD}")
    E("s_lshl_b32 s4, s2, 3"); E("s_add_u32 s4, s4, s3"); E("s_lshl_b32 s4, s4, 7"); E(f"s_add_u32 s4, s4, {STB_WS:#x}")
    E("v_mov_b32 v1, 0"); setexec(1,0)
    for i in range(20):
        E(f"v_mov_b32 v2, s{STS+i}"); E(f"buffer_store_dword v2, v1, {WS}, s4 offen offset:{4*i}"); nop(2)
    E("s_waitcnt vmcnt(0)")
L("L_end")
E("s_endpgm")
for k in ('cm','g1f','fin','wt','rt'): out.extend(secs[k])
out.append("L_codeend:")
out.append(""".section .rodata,"a"
.p2align 6
.amdhsa_kernel %s_kernel
  .amdhsa_next_free_vgpr 256
  .amdhsa_next_free_sgpr 102
  .amdhsa_accum_offset 256
  .amdhsa_group_segment_fixed_size 0
  .amdhsa_kernarg_size 88
  .amdhsa_user_sgpr_count 2
  .amdhsa_user_sgpr_kernarg_segment_ptr 1
  .amdhsa_system_sgpr_workgroup_id_x 1
.end_amdhsa_kernel"""%NAME)
open(sys.argv[1],"w").write("\n".join(out)+"\n")
```

```python
import sys
NAME="interleave_layers__sliding_block_cached__dense_activation_silu__decode"
opts=dict(a.split('=') for a in sys.argv[2:])
STAMP=int(opts.get('stamp',0))
STAGE=int(opts.get('stage',0))
NT=opts.get('nt','0')=='1'
out=[]
secs={k:[] for k in ('wt','cm','g1f','rt','fin')}; cur=[out]
def sec(k):
    old=cur[0]; cur[0]=secs[k] if isinstance(k,str) else k; return old
def E(s): cur[0].append("    "+s)
def L(s): cur[0].append(s+":")
def C(s): out.append("    ; "+s)
def nop(n): E(f"s_nop {n-1}")
LS=0x300000
AP,OP,F1P,F2P,QST,F1ST,AST,QP,F1CS=0,0x80000,0x100000,0x180000,0x200000,0x208000,0x210000,0x218000,0x2A8000
FLG,EPO=0x2C0000,0x2D0000
STB_WS=0x600000
WS_REC=0x800000
OPB=[0,4096,8192,12288,16384]; PB=20480; SMB=24576; BOUNCE=25600; BSZ=8704
LDS=61440
WS="s[8:11]"; SWQ="s[12:15]"; SK="s[16:19]"; SV="s[20:23]"; SWO="s[24:27]"; SW1="s[28:31]"; SW2="s[32:35]"
SX="s[36:39]"; SOUT="s[40:43]"; SDBG="s[44:47]"
sW,sLO,sHI,sLAY,sBUD,sT,sT2,sETA="s48","s49","s50","s51","s52","s53","s54","s55"
sA1,sA2="s56","s57"
offs=["pQP","pAP","pAST","pOP","pF1","pF2","pQST","pF1ST","gF2","gOP","gQP","gQCS","gQST","gAP","gAST","gF1","gF1CS","gF1ST"]
S={n:f"s{58+i}" for i,n in enumerate(offs)}
sC0,sC1="s76","s77"; sP="s[78:79]"; sP0,sP1="s78","s79"
STS=80
nst=[0]
def stamp(i):
    if STAMP:
        E("s_memrealtime s[100:101]"); E("s_waitcnt lgkmcnt(0)")
        E(f"s_cmp_eq_u32 {sLAY}, 0"); E(f"s_cselect_b32 s{STS+i}, s100, s{STS+i}");
        if STAMP!=2 or i==9: E(f"s_cselect_b32 s{STS+10+i}, s{STS+10+i}, s100")
def stamp2(i):
    if STAMP==2: E("s_memrealtime s[100:101]"); E("s_waitcnt lgkmcnt(0)"); E(f"s_mov_b32 s{STS+i}, s100")
def setexec(lo,hi):
    E(f"s_mov_b32 exec_lo, {lo:#x}"); E(f"s_mov_b32 exec_hi, {hi:#x}")
def fullexec(): E("s_mov_b64 exec, -1")
def vr(a,n): return f"v[{a}:{a+n-1}]"
def mfma(d,a,b,c): E(f"v_mfma_f32_16x16x32_bf16 {vr(d,4)}, {vr(a,4)}, {vr(b,4)}, {('0' if c is None else vr(c,4))}")
def srd(s,ptr,n):
    b=int(s[2:s.index(':')])
    E(f"s_mov_b32 s{b}, s{ptr}"); E(f"s_and_b32 s{b+1}, s{ptr+1}, 0xffff"); E(f"s_mov_b32 s{b+2}, {n:#x}"); E(f"s_mov_b32 s{b+3}, 0x20000")
vL16,vAQ,vAL,vLANE,vN,vG=255,254,253,252,251,250
hdr=open(f"cdna_kernels/{NAME}.s.ref").read().split("; Override")[0]
out.append(hdr.rstrip())
out.append(f"; @launch grid=(256,1,1) block=(512,1,1) lds={LDS}")
DOC="""
; ---------------------------------------------------------------------------------------------
; Persistent single-launch kernel, 256 workgroups x 8 waves (one per CU); extra workgroups exit.
;  waves 0-3 ("weight waves"): keep one 128x128 tile of wq, K, V, wo, w1, w2 in registers (loaded
;  Hand-off: every slot is first filled with an all-ones pattern by its producer in this launch
;      read from d_ws on entry and advanced once per launch); a consumer re-polls the lanes that
;      still hold the pattern.  All spins are bounded.  5 hand-offs per layer, 2 layers.
; ---------------------------------------------------------------------------------------------"""
out.append('.amdgcn_target "amdgcn-amd-amdhsa--gfx950"'+DOC+'\n.text\n.globl %s_kernel\n.p2align 8\n.type %s_kernel,@function\n%s_kernel:'%(NAME,NAME,NAME))
E("s_cmp_ge_u32 s2, 256"); E("s_cbranch_scc1 L_end")
if opts.get('perm'): E("s_lshr_b32 s3, s2, 3"); E("s_and_b32 s2, s2, 7"); E("s_lshl_b32 s2, s2, 5"); E("s_or_b32 s2, s2, s3")
E("s_load_dwordx16 s[80:95], s[0:1], 0")
E("s_load_dwordx4 s[96:99], s[0:1], 64")
E("s_load_dwordx2 s[100:101], s[0:1], 80")
PF=int(opts.get('pf',1))
if PF:
    E("s_getpc_b64 s[4:5]"); L("L_pc")
    E("v_lshlrev_b32 v2, 6, v0"); E("v_min_u32 v2, L_codeend-L_pc-4, v2")
    E("v_mov_b32 v3, s5"); E("v_add_co_u32 v2, vcc, s4, v2"); E("v_addc_co_u32 v3, vcc, 0, v3, vcc")
    E("global_load_dword v247, v[2:3], off")
E("v_lshrrev_b32 v1, 6, v0"); E(f"v_and_b32 v{vLANE}, 63, v0")
E(f"s_and_b32 {sLO}, s2, 7"); E(f"v_readfirstlane_b32 s3, v1"); E(f"s_lshr_b32 {sHI}, s2, 3")
E(f"s_and_b32 {sW}, s3, 3")
E(f"v_lshlrev_b32 v{vL16}, 4, v{vLANE}"); E(f"v_and_b32 v{vN}, 15, v{vLANE}"); E(f"v_lshrrev_b32 v{vG}, 4, v{vLANE}")
E(f"s_lshr_b32 s4, {sHI}, 3")
E(f"s_and_b32 s5, {sHI}, 7")
def lin(dst,base,terms):
    E(f"s_mov_b32 {dst}, {base:#x}")
    for r,sh in terms:
        E(f"s_lshl_b32 {sT2}, {r}, {sh}"); E(f"s_add_u32 {dst}, {dst}, {sT2}")
def roles():
    E(f"s_lshl_b32 {sETA}, s4, 3"); E(f"s_add_u32 {sETA}, {sETA}, {sLO}")
    E(f"s_add_u32 {sT}, {sHI}, 1"); E(f"s_and_b32 {sT}, {sT}, 3"); E(f"s_and_b32 {sT2}, {sHI}, 28"); E(f"s_add_u32 s6, {sT}, {sT2}")
    E("s_cmp_lt_u32 s6, 28"); E(f"s_cselect_b32 {sA1}, 1, 0"); E("s_lshl_b32 s6, s6, 3"); E(f"s_add_u32 s6, s6, {sLO}")
    E(f"s_xor_b32 {sT}, {sT}, 2"); E(f"s_add_u32 {sT2}, {sT2}, 4"); E(f"s_and_b32 {sT2}, {sT2}, 28"); E(f"s_add_u32 {sT}, {sT}, {sT2}")
    E(f"s_mul_i32 s7, {sLO}, 28"); E(f"s_add_u32 s7, s7, {sT}"); E(f"s_lshl_b32 {sT2}, {sT}, 3"); E(f"s_add_u32 {sT2}, {sT2}, {sLO}")
    E(f"s_cmp_lt_u32 {sT}, 28"); E(f"s_cselect_b32 {sA2}, 1, 0"); E(f"s_cselect_b32 s7, s7, {sT2}")
    E(f"s_mov_b32 {sLAY}, 0"); E(f"s_mov_b32 {sBUD}, 40000")
CE=int(opts.get('ce',0))
def x_addr(T=108,vOW=147):
    E(f"v_and_b32 v{T}, 7, v{vN}"); E(f"v_lshrrev_b32 v{T+1}, 3, v{vN}")
    E(f"v_lshlrev_b32 v{vOW}, 11, v{T}"); E(f"v_lshl_add_u32 v{vOW}, v{vG}, 3, v{vOW}")
    lin(sT,0,[(sLO,8),(sW,6)]); E(f"v_add_u32 v{vOW}, {sT}, v{vOW}")
def x_load(T=108,vOW=147):
    E(f"buffer_load_dwordx2 v[{T+8}:{T+9}], v{vOW}, {SX}, 0 offen"); E(f"buffer_load_dwordx2 v[{T+10}:{T+11}], v{vOW}, {SX}, 0 offen offset:32")
def sm_addr(T=108):
    E(f"v_lshlrev_b32 v{T+2}, 4, v{vN}"); lin(sT,QP+0x80000,[("s2",8)]); E(f"v_add_u32 v{T+3}, {sT}, v{T+2}")
    setexec(0xFF0000,0); E(f"v_add_u32 v{T+3}, {S['pQST']}, v{T+2}")
    setexec(0,0xFF); E(f"v_add_u32 v{T+3}, {S['pAST']}, v{T+2}")
def lin1():
    lin(S['pQP'],QP,[("s2",11)]); lin(S['pAP'],AP,[("s4",17),(sLO,14),("s5",11)]); lin(S['pAST'],AST,[("s4",13),(sLO,10),("s5",7)]); lin(S['pQST'],QST,[("s2",7)])
if CE:
    E("s_cmp_lt_u32 s3, 4"); E("s_cbranch_scc1 L_wq")
    x_addr()
    if CE==2: E("s_waitcnt lgkmcnt(0)"); srd(SX,80,16384); x_load()
    for i in range(4): E(f"v_mov_b32 v{i}, -1")
    lin1(); sm_addr(); fullexec()
    if CE==1: E("s_waitcnt lgkmcnt(0)"); srd(SX,80,16384); x_load()
    E(f"s_cmp_lg_u32 {sW}, 1"); E("s_cbranch_scc1 L_common")
    srd(WS,100,WS_REC)
    for i in range(2): E(f"buffer_store_dwordx4 v[0:3], v{vL16}, {WS}, {S['pQP']} offen offset:{i*1024} sc1")
    setexec(0xFFFFFF,0xFF); E(f"buffer_store_dwordx4 v[0:3], v111, {WS}, 0 offen sc1"); fullexec()
    for i in range(2): E(f"buffer_store_dwordx4 v[0:3], v{vL16}, {WS}, {S['pAP']} offen offset:{i*1024} sc1")
    E("s_branch L_common")
    L("L_wq"); E("s_waitcnt lgkmcnt(0)"); srd(SWQ,86,1024*4096*2)
else:
    roles(); E("s_waitcnt lgkmcnt(0)"); srd(SWQ,86,1024*4096*2)
    E("s_cmp_ge_u32 s3, 4"); E("s_cbranch_scc1 L_common")
def tile_voff(v,stride):
    E(f"v_lshrrev_b32 v{v}, 2, v{vLANE}"); E(f"v_mul_u32_u24 v{v}, {stride}, v{v}")
    E(f"v_and_b32 v{v+1}, 3, v{vLANE}"); E(f"v_lshl_add_u32 v{v}, v{v+1}, 4, v{v}")
    E(f"s_lshl_b32 {sT2}, {sW}, 6"); E(f"v_add_u32 v{v}, {sT2}, v{v}")
SWZ=int(opts.get('swz',0))
def swz_fix():
    if SWZ==1:
        E(f"s_bfe_u32 {sT2}, {sT}, 0x20008"); E(f"s_sub_u32 {sT2}, {sW}, {sT2}"); E(f"s_mul_i32 {sT2}, {sT2}, 192"); E(f"s_add_u32 {sT}, {sT}, {sT2}")
    if SWZ==2:
        E(f"s_bfe_u32 {sT2}, {sT}, 0x10008"); E(f"s_lshl_b32 {sT2}, {sT2}, 7"); E(f"s_sub_u32 {sT}, {sT}, {sT2}")
        E(f"s_lshr_b32 {sT2}, {sW}, 1"); E(f"s_lshl_b32 {sT2}, {sT2}, 7"); E(f"s_add_u32 {sT}, {sT}, {sT2}")
def tile_loads(dst,v,srdn,step):
    if step>4096: swz_fix()
    for i in range(8):
        E(f"buffer_load_dwordx4 {vr(dst+4*i,4)}, v{v}, {srdn}, {sT} offen"+(" nt" if NT and (int(opts.get('ntm','63'))>>(dst//32))&1 else ""))
        if i<7: E(f"s_add_u32 {sT}, {sT}, {step}")
RWQ,RK,RV,RWO,RW1,RW2,RB,RD=0,32,64,96,128,160,192,208
def ld_wq():
    tile_voff(RD,8192); E(f"s_lshl_b32 {sT}, {sLO}, 20"); E(f"s_lshl_b32 {sT2}, {sHI}, 8"); E(f"s_add_u32 {sT}, {sT}, {sT2}")
    tile_loads(RWQ,RD,SWQ,16*8192)
ld_wq()
L("L_common")
E(f"s_mov_b32 s1, {EPO:#x}"); E("s_load_dword s0, s[100:101], s1")
if CE: roles()
srd(WS,100,WS_REC); srd(SX,80,16384); srd(SOUT,96,16384)
E("s_cmp_ge_u32 s3, 4"); E("s_cbranch_scc1 L_common2")
srd(SK,82,8*4*4096*128*2); srd(SV,84,8*4*4096*128*2); srd(SWO,88,4096*1024*2); srd(SW1,92,1024*3584*2); srd(SW2,94,3584*1024*2)
def kv_base():
    lin(sT,3072*256,[(sLO,22),("s4",20),("s5",15)])
def ld_k():
    kv_base(); E(f"s_lshl_b32 {sT2}, {sW}, 13"); E(f"s_add_u32 {sT}, {sT}, {sT2}")
    tile_loads(RK,vL16,SK,1024)
def ld_v():
    tile_voff(RD+2,256); kv_base(); tile_loads(RV,RD+2,SV,16*256)
def ld_wo():
    tile_voff(RD+4,2048); lin(sT,0,[(sETA,18),("s5",8)]); E(f"s_xor_b32 {sT}, {sT}, 0x200"); tile_loads(RWO,RD+4,SWO,16*2048)
def inact(flag,v):
    E(f"s_cmp_eq_u32 {flag}, 1"); E(f"s_cselect_b32 {sT}, {sT}, 0"); E(f"s_cselect_b32 {sT2}, 0, 0x40000000"); E(f"v_or_b32 v{v}, {sT2}, v{v}")
def ld_w1():
    tile_voff(RD+6,7168); E(f"s_mul_i32 {sT}, {sLO}, {128*7168}"); E(f"s_lshr_b32 {sT2}, s6, 3"); E(f"s_lshl_b32 {sT2}, {sT2}, 8"); E(f"s_add_u32 {sT}, {sT}, {sT2}")
    inact(sA1,RD+6); tile_loads(RW1,RD+6,SW1,16*7168)
def ld_w2():
    tile_voff(RD+4,2048); E(f"s_lshr_b32 {sT}, s7, 3"); E(f"s_lshl_b32 {sT}, {sT}, 18"); E(f"s_and_b32 {sT2}, s7, 7"); E(f"s_lshl_b32 {sT2}, {sT2}, 8"); E(f"s_add_u32 {sT}, {sT}, {sT2}"); inact(sA2,RD+4); tile_loads(RW2,RD+4,SW2,16*2048)
sched={0:[[ld_k,ld_v,ld_wo,ld_w1,ld_w2],[],[],[],[]],
       1:[[ld_k,ld_v],[ld_wo],[ld_w1],[ld_w2],[]],
       2:[[ld_k],[ld_v],[ld_wo],[ld_w1],[ld_w2]],
       3:[[ld_k,ld_v],[ld_wo,ld_w1],[ld_w2],[],[]],4:[[],[],[],[],[]]}[4]
order=['wq']; names={ld_k:'k',ld_v:'v',ld_wo:'wo',ld_w1:'w1',ld_w2:'w2'}
q=['wq']*8
def issue(pt):
    for f in sched[pt]:
        f(); q.extend([names[f]]*8)
def iss(f):
    f(); q.extend([names[f]]*8)
NB={t:int(c) for t,c in zip("aofq",opts.get('nb','000'))}
def release(tag,at):
    m=NB.get(tag,0) if tag else 0
    if m==0: return
    if (m==3 and at==0) or (m==1 and at==1): E("s_barrier")
    if (m==2 and at==1) or (m==4 and at==0) or (m==5 and at==5):
        if tag=="f": E("s_waitcnt vmcnt(0)")
        else:
            last=max(i for i,x in enumerate(q) if x=='st'); E(f"s_waitcnt vmcnt({len(q)-1-last})")
        E("s_barrier")
def ack(tag=None):
    if tag: E(f"s_cmp_eq_u32 {sLAY}, 0"); E(f"s_cbranch_scc1 L_na_{tag}")
    if int(opts.get('ak',1)): E("s_waitcnt vmcnt(0)")
    ad=int(opts.get('ad'+(tag or '2'),opts.get('ad',0)))
    if ad: E(f"s_sleep {ad}")
    late=tag and NB.get(tag,0)
    if tag and not late: L(f"L_na_{tag}")
    E("s_barrier")
    if late: L(f"L_na_{tag}")
def wait_for(nm):
    last=max(i for i,x in enumerate(q) if x==nm); n=len(q)-1-last
    E(f"s_waitcnt vmcnt({n})")
    stamp2({'wq':11,'clr':12,'k':13,'v':14,'wo':15,'w1':16,'w2':17,'c1':18}[nm])
EXP=opts.get('exp','')
SC=int(opts.get('sc',0)); YB=int(opts.get('yb',1)) or SC in (5,7,8)
if SC in (1,2) and not EXP: iss(ld_k)
L("L_common2")
lin(S['pQP'],QP,[("s2",11)]); lin(S['pAP'],AP,[("s4",17),(sLO,14),("s5",11)]); lin(S['pAST'],AST,[("s4",13),(sLO,10),("s5",7)])
lin(S['pOP'],OP,[("s5",16),(sETA,11)]); E(f"s_xor_b32 {S['pOP']}, {S['pOP']}, 0x20000"); lin(S['pF1'],F1P,[("s6",11)])
E(f"s_lshr_b32 {sC0}, s7, 3"); E(f"s_and_b32 {sC1}, s7, 7"); lin(S['pF2'],F2P,[(sC1,16),(sC0,11)])
lin(S['pQST'],QST,[("s2",7)]); lin(S['pF1ST'],F1ST,[("s6",7)])
if STAMP:
    for i in range(20): E(f"s_mov_b32 s{STS+i}, 0")
stamp(0)
if EXP:
    E("s_cmp_ge_u32 s3, 4"); E("s_cbranch_scc1 L_fin")
    E("s_waitcnt vmcnt(0)"); stamp(1)
    for i,f in enumerate([ld_k,ld_v,ld_wo,ld_w1,ld_w2,ld_wq,ld_k]):
        f(); E("s_waitcnt vmcnt(0)"); stamp(2+i)
    E("s_branch L_fin")
    for nm in ('k','v','wo','w1','w2'): q.extend([nm]*8)
vEP=248
E("s_cmp_lt_u32 s3, 4"); E("s_cbranch_scc1 L_wt")
sec('wt'); L("L_wt")
E(f"s_lshl_b32 {sT}, {sW}, 6"); E(f"v_lshl_add_u32 v249, v{vG}, 4, {sT}")
E(f"s_lshl_b32 {sT}, {sW}, 9"); E(f"v_lshl_add_u32 v{vAQ}, v{vN}, 6, {sT}"); E(f"v_lshl_add_u32 v{vAQ}, v{vG}, 4, v{vAQ}"); E(f"v_lshl_add_u32 v{vAL}, v{vG}, 7, {sT}"); E(f"v_lshl_add_u32 v{vAL}, v{vN}, 4, v{vAL}")
E(f"s_mul_i32 {sT}, s6, 1792"); E(f"s_sub_u32 {sT}, {F1CS-F1P:#x}, {sT}")
setexec(0x01000100,0x01000100); E(f"v_add_u32 v{vAL}, {sT}, v249")
E(f"s_mul_i32 {sT}, s2, 1792"); E(f"s_sub_u32 {sT}, 0x80000, {sT}"); E(f"v_add_u32 v{vAQ}, {sT}, v249"); fullexec()
def flag_store(word):
    lin(sT,FLG+word*4,[("s2",7)])
    setexec(1,0); E(f"buffer_store_dword v{vEP}, off, {WS}, {sT} sc1"); fullexec()
M8=(0x00FF00FF,0x00FF00FF); M9=(0x01FF01FF,0x01FF01FF)
def bump(keys):
    for k in keys: E(f"s_add_u32 {S[k]}, {S[k]}, {LS:#x}")
def l0only(tag):
    E(f"s_cmp_lg_u32 {sLAY}, 0"); E(f"s_cbranch_scc1 L_skip_{tag}")
def bounce(nm,R,natural,nxt=None,rel=None):
    t=RD+8
    E(f"s_mul_i32 {sT}, {sW}, {BSZ}"); E(f"s_add_u32 {sT}, {sT}, {BOUNCE}")
    E(f"v_add_u32 v{t}, {sT}, v{vL16}")
    E(f"v_lshrrev_b32 v{t+1}, 2, v{vN}"); E(f"v_lshl_add_u32 v{t+1}, v{vG}, {3 if natural else 2}, v{t+1}")
    E(f"v_lshlrev_b32 v{t+1}, 6, v{t+1}"); E(f"v_and_b32 v{t+2}, 3, v{vLANE}"); E(f"v_lshl_add_u32 v{t+1}, v{t+2}, 4, v{t+1}")
    E(f"v_add_u32 v{t+1}, {sT}, v{t+1}")
    wait_for(nm)
    if nm=='v' and YB: E("s_barrier")
    if nxt: iss(nxt)
    for i in range(8): E(f"ds_write_b128 v{t}, {vr(R+4*i,4)} offset:{i*1024}")
    E("s_waitcnt lgkmcnt(0)")
    release(rel,0)
    for tt in range(2):
        for k in range(4):
            for u in range(2):
                E(f"ds_read_b64_tr_b16 {vr(R+16*tt+4*k+2*u,2)}, v{t+1} offset:{k*2048+u*(256 if natural else 1024)+8*tt}")
    E("s_waitcnt lgkmcnt(0)")
    release(rel,1)
def bounce_k():
    t=RD+8
    E(f"s_mul_i32 {sT}, {sW}, {BSZ}"); E(f"s_add_u32 {sT}, {sT}, {BOUNCE}")
    E(f"v_mul_u32_u24 v{t}, 272, v{vG}"); E(f"v_lshl_add_u32 v{t}, v{vN}, 4, v{t}"); E(f"v_add_u32 v{t}, {sT}, v{t}")
    E(f"v_mul_u32_u24 v{t+1}, 272, v{vN}"); E(f"v_lshl_add_u32 v{t+1}, v{vG}, 4, v{t+1}"); E(f"v_add_u32 v{t+1}, {sT}, v{t+1}")
    VE=int(opts.get('ve',1))
    if NB.get('q',0)==5: release('q',5)
    if VE: iss(ld_v)
    if NB.get('q',0)==6: E("s_barrier")
    wait_for('k')
    if SC in (0,7,8) and not VE: iss(ld_v)
    for i in range(8): E(f"ds_write_b128 v{t}, {vr(RK+4*i,4)} offset:{i*1088}")
    E("s_waitcnt lgkmcnt(0)")
    release('q',0)
    for tt in range(2):
        for k in range(4): E(f"ds_read_b128 {vr(RK+16*tt+4*k,4)}, v{t+1} offset:{tt*16*272+k*64}")
    E("s_waitcnt lgkmcnt(0)")
    release('q',1)
def read_b(base):
    for k in range(4): E(f"ds_read_b128 {vr(RB+4*k,4)}, v{vL16} offset:{base+k*1024}")
def mm(R):
    for k in range(4):
        E(f"s_waitcnt lgkmcnt({3-k})" if not STAMP else "s_waitcnt lgkmcnt(0)")
        for tt in range(2): mfma(RD+4*tt,R+16*tt+4*k,RB+4*k,None if k==0 else RD+4*tt)
def pack_store(src,va,so,mask):
    for i in range(4): E(f"v_cvt_pk_bf16_f32 v{RD+8+i}, v{src+2*i}, v{src+2*i+1}")
    if mask is M9: E(f"s_mov_b32 exec_lo, {sC0}"); E(f"s_mov_b32 exec_hi, {sC0}")
    else: setexec(*mask)
    E(f"buffer_store_dwordx4 {vr(RD+8,4)}, v{va}, {WS}, {so} offen sc1"); fullexec(); q.append('st')
def gemm_phase(R,p,va,so,mask):
    read_b(OPB[p]); mm(R); nop(8); pack_store(RD,va,so,mask)
E(f"s_mov_b32 {sC0}, 0x01FF01FF"); E("s_waitcnt lgkmcnt(0)")
if SC==5: E("s_barrier"); iss(ld_k)
L("L_wloop")
l0only("wq"); bounce('wq',RWQ,False,ld_v if SC in (1,2,5) else ld_k); L("L_skip_wq")
E("s_barrier")
stamp(1)
gemm_phase(RWQ,0,vAQ,S['pQP'],M9)
stamp(2)
ack("q")
l0only("k"); bounce_k(); bounce('v',RV,False,ld_wo if SC!=1 else None); L("L_skip_k")
E("s_barrier")
stamp(3)
def at_bar(tag,f):
    l0only(tag); iss(f); L("L_skip_"+tag)
def l1clear():
    for i in range(4): E(f"v_mov_b32 v{240+i}, -1")
    E(f"s_lshl_b32 {sT}, s6, 2"); E(f"s_add_u32 {sT}, {sT}, {sW}"); E(f"s_mul_i32 {sT}, {sT}, 3072"); E(f"s_add_u32 {sT}, {sT}, {LS:#x}")
    E(f"v_mov_b32 v244, v{vL16}"); inact(sA1,244)
    for i in range(3): E(f"buffer_store_dwordx4 v[240:243], v244, {WS}, {sT} offen offset:{i*1024} sc1"); q.append('c1')
read_b(OPB[1])
if SC==1: at_bar("iwo",ld_wo)
if SC in (2,5,7,8): at_bar("iw1",ld_w1)
mm(RK);
E(f"s_mov_b32 {sT}, 0x3e0293ee")
nop(7)
d=RD; t=RD+8
E(f"v_max3_f32 v{t}, v{d}, v{d+1}, v{d+2}"); E(f"v_max3_f32 v{t+1}, v{d+3}, v{d+4}, v{d+5}")
E(f"v_max3_f32 v{t}, v{t}, v{d+6}, v{d+7}"); E(f"v_max_f32 v{t}, v{t}, v{t+1}")
def xrow(op,a,b):
    for sw in ("16","32"):
        E(f"v_mov_b32 v{b}, v{a}"); nop(2); E(f"v_permlane{sw}_swap_b32 v{a}, v{b}"); E(f"{op} v{a}, v{a}, v{b}")
xrow("v_max_f32",t,t+1)
E(f"v_mul_f32 v{t}, {sT}, v{t}")
for i in range(8): E(f"v_fma_f32 v{d+i}, v{d+i}, {sT}, -v{t}")
for i in range(8): E(f"v_exp_f32 v{d+i}, v{d+i}")
nop(1)
for i in range(4): E(f"v_cvt_pk_bf16_f32 v{t+4+i}, v{d+2*i}, v{d+2*i+1}")
E(f"s_lshl_b32 {sT}, {sW}, 10"); E(f"v_add_u32 v{t+2}, {sT}, v{vL16}")
E(f"ds_write_b128 v{t+2}, {vr(t+4,4)} offset:{PB}")
E(f"v_add_f32 v{d}, v{d}, v{d+1}"); E(f"v_add_f32 v{d+2}, v{d+2}, v{d+3}"); E(f"v_add_f32 v{d+4}, v{d+4}, v{d+5}"); E(f"v_add_f32 v{d+6}, v{d+6}, v{d+7}")
E(f"v_add_f32 v{d}, v{d}, v{d+2}"); E(f"v_add_f32 v{d+4}, v{d+4}, v{d+6}"); E(f"v_add_f32 v{t+1}, v{d}, v{d+4}")
xrow("v_add_f32",t+1,t+3)
E(f"s_lshl_b32 {sT}, {sW}, 3"); E(f"v_lshl_add_u32 v{t+2}, v{vN}, 5, {sT}")
setexec(0xFFFF,0); E(f"ds_write_b64 v{t+2}, {vr(t,2)} offset:{SMB}"); fullexec()
E("s_waitcnt lgkmcnt(0)")
E("s_barrier")
E(f"v_lshlrev_b32 v249, 5, v{vN}")
read_b(PB)
E(f"ds_read_b128 v[240:243], v249 offset:{SMB}"); E(f"ds_read_b128 v[244:247], v249 offset:{SMB+16}")
for k in range(4):
    E(f"s_waitcnt lgkmcnt({5-k})" if not STAMP else "s_waitcnt lgkmcnt(0)")
    for tt in range(2): mfma(RD+8*k+4*tt,RV+16*tt+4*k,RB+4*k,None)
E("s_waitcnt lgkmcnt(0)")
E("v_max3_f32 v248, v240, v242, v244"); E("v_max_f32 v248, v248, v246")
for i in range(4): E(f"v_sub_f32 v{240+2*i}, v{240+2*i}, v248")
for i in range(4): E(f"v_exp_f32 v{240+2*i}, v{240+2*i}")
nop(1)
E("v_mul_f32 v249, v240, v241")
for i in range(1,4): E(f"v_fmac_f32 v249, v{240+2*i}, v{241+2*i}")
for i in range(8): E(f"v_mul_f32 v{RD+i}, v240, v{RD+i}")
for k in range(1,4):
    for i in range(8): E(f"v_fmac_f32 v{RD+i}, v{240+2*k}, v{RD+8*k+i}")
pack_store(RD,vAQ,S['pAP'],M8)
E(f"s_lshl_b32 {sT}, {sW}, 30"); E(f"v_lshl_add_u32 v240, v{vN}, 3, {sT}")
setexec(0xFF,0)
E(f"buffer_store_dwordx2 v[248:249], v240, {WS}, {S['pAST']} offen sc1"); fullexec(); q.append('st')
stamp(4)
ack("a")
l0only("wo")
JIT=int(opts.get('jit',0)); BOTH=int(opts.get('both',0))
if BOTH:
    if BOTH==2: l1clear()
    iss(ld_w1); iss(ld_w2)
    if BOTH==1: l1clear()
    bounce('wo',RWO,True); bounce('w1',RW1,False)
elif JIT:
    if 'c1e' in opts: l1clear()
    bounce('wo',RWO,True,ld_w1,'a')
    if JIT==2: wait_for('w1'); iss(ld_w2)
elif SC==0: bounce('wo',RWO,True,ld_w1); bounce('w1',RW1,False,None if 'w2d' in opts else ld_w2)
elif SC in (7,8): bounce('wo',RWO,True); bounce('w1',RW1,False,ld_w2 if SC==7 else None)
else:
    if SC==5: iss(ld_w2)
    l1clear(); bounce('wo',RWO,True)
if SC in (2,5): bounce('w1',RW1,False)
L("L_skip_wo")
E("s_barrier")
stamp(5)
if SC==1: at_bar("iw1",ld_w1)
if SC in (2,8) or opts.get('w2d')=='1': at_bar("iw2",ld_w2)
gemm_phase(RWO,2,vAL,S['pOP'],M8)
ack("o")
l0only("w1")
if opts.get('w2d')=='2': iss(ld_w2)
if SC in (0,7,8) and BOTH in (0,3) and 'c1e' not in opts: l1clear()
if JIT:
    if JIT==3: E("s_barrier")
    bounce('w1',RW1,False,ld_w2 if JIT!=2 else None,'o'); wait_for('c1')
elif SC==1: bounce('w1',RW1,False)
else: bounce('w2',RW2,False); E("s_waitcnt vmcnt(0)"); stamp2(18)
L("L_skip_w1")
E("s_barrier")
stamp(6)
if SC==1: at_bar("iw2",ld_w2)
E(f"s_cmp_eq_u32 {sA1}, 0"); E("s_cbranch_scc1 L_nof1")
gemm_phase(RW1,3,vAL,S['pF1'],M9); q.pop()
L("L_nof1")
if SC==1 or JIT: ack("f"); l0only("w2"); bounce('w2',RW2,False,None,'f'); L("L_skip_w2")
else: ack()
E("s_barrier")
stamp(7)
E(f"s_cmp_eq_u32 {sA2}, 0"); E("s_cbranch_scc1 L_nof2")
gemm_phase(RW2,4,vAL,S['pF2'],M8)
L("L_nof2")
stamp(8)
ack()
bump(['pQP','pAP','pAST','pOP','pF1','pF2']); E(f"s_mov_b32 {sC0}, 0x00FF00FF")
E(f"s_add_u32 {sLAY}, {sLAY}, 1"); E(f"s_cmp_lt_u32 {sLAY}, 2"); E("s_cbranch_scc1 L_wloop")
E("s_branch L_fin")
sec('cm')
G=0; X=64; MP=72; A1=80; AG=88; D0=92; D1=96; D2=100; D3=104; T=108; AW=160
vG1,vCS,vST,vG3,vAST,vLW,vSTa,vOW,vONE=140,141,142,143,144,145,146,147,148
if CE: E(f"s_cmp_eq_u32 {sW}, 1"); E("s_cbranch_scc1 L_nsm")
else:
    E(f"v_and_b32 v{T}, 7, v{vN}"); E(f"v_lshrrev_b32 v{T+1}, 3, v{vN}")
    E(f"v_lshlrev_b32 v{vOW}, 11, v{T}"); E(f"v_lshl_add_u32 v{vOW}, v{vG}, 3, v{vOW}")
    lin(sT,0,[(sLO,8),(sW,6)]); E(f"v_add_u32 v{vOW}, {sT}, v{vOW}")
    E(f"buffer_load_dwordx2 v[{T+8}:{T+9}], v{vOW}, {SX}, 0 offen"); E(f"buffer_load_dwordx2 v[{T+10}:{T+11}], v{vOW}, {SX}, 0 offen offset:32")
    for i in range(4): E(f"v_mov_b32 v{G+i}, -1")
    E(f"s_cmp_lg_u32 {sW}, 1"); E("s_cbranch_scc1 L_cl2")
    for i in range(2): E(f"buffer_store_dwordx4 {vr(G,4)}, v{vL16}, {WS}, {S['pQP']} offen offset:{i*1024} sc1")
    E(f"v_lshlrev_b32 v{T+2}, 4, v{vN}"); lin(sT,QP+0x80000,[("s2",8)]); E(f"v_add_u32 v{T+3}, {sT}, v{T+2}")
    setexec(0xFF0000,0); E(f"v_add_u32 v{T+3}, {S['pQST']}, v{T+2}")
    setexec(0,0xFF); E(f"v_add_u32 v{T+3}, {S['pAST']}, v{T+2}")
    setexec(0xFFFFFF,0xFF); E(f"buffer_store_dwordx4 {vr(G,4)}, v{T+3}, {WS}, 0 offen sc1"); fullexec()
L("L_cl2")
E(f"s_mov_b32 {sT}, {S['pAP']}")
E(f"s_cmp_eq_u32 {sW}, 0"); E(f"s_cselect_b32 {sT}, {S['pOP']}, {sT}")
E(f"s_cmp_eq_u32 {sW}, 2"); E(f"s_cselect_b32 {sT}, {S['pF1']}, {sT}")
E(f"s_cmp_eq_u32 {sW}, 3"); E(f"s_cselect_b32 {sT}, {S['pF2']}, {sT}")
for i in range(2): E(f"buffer_store_dwordx4 {vr(G,4)}, v{vL16}, {WS}, {sT} offen offset:{i*1024} sc1")
E(f"s_bitcmp1_b32 {sW}, 0"); E("s_cbranch_scc1 L_nsm")
lin(sT,F1CS,[("s6",8)])
E(f"s_cmp_eq_u32 {sW}, 0"); E(f"s_cselect_b32 {sT}, {S['pF1ST']}, {sT}"); E(f"s_cselect_b32 exec_lo, 0xff, -1"); E("s_and_b32 exec_lo, exec_lo, 0xffff"); E("s_mov_b32 exec_hi, 0")
E(f"buffer_store_dwordx4 {vr(G,4)}, v{vL16}, {WS}, {sT} offen sc1")
L("L_nsm"); fullexec(); stamp2(12)
if SC==5: E("s_barrier")
E(f"v_lshlrev_b32 v{vSTa}, 3, v{T}"); setexec(0xFFFFFFFF,0); E(f"v_add_u32 v{vSTa}, 4, v{vSTa}")
fullexec()
lin(S['gF2'],(F2P-LS)&0xffffffff,[(sLO,16)]); lin(S['gOP'],OP,[(sLO,16)]); lin(S['gQP'],QP,[("s4",17),(sLO,6)]); lin(S['gQCS'],QP+8*65536,[("s4",14)])
lin(S['gQST'],QST,[(sHI,10),(sLO,3)]); lin(S['gAP'],AP,[("s4",17),(sLO,6)]); lin(S['gAST'],AST,[("s4",13),(sLO,3)])
E(f"s_lshr_b32 {sC0}, s7, 3")
lin(S['gF1'],F1P,[(sC0,14)]); lin(S['gF1CS'],F1CS,[(sC0,11)]); lin(S['gF1ST'],F1ST,[(sC0,10)])
E(f"v_and_b32 v{T+3}, 2, v{vG}"); E(f"v_add_u32 v{T+3}, v{T+3}, v{T+1}")
E(f"v_and_b32 v{T+4}, 1, v{vG}")
E(f"s_lshl_b32 {sT}, {sW}, 9"); E(f"v_lshl_add_u32 v{vG1}, v{T+3}, 11, {sT}"); E(f"v_lshl_add_u32 v{vG1}, v{T+4}, 7, v{vG1}"); E(f"v_lshl_add_u32 v{vG1}, v{T}, 4, v{vG1}")
E(f"s_lshl_b32 {sT}, {sW}, 6"); E(f"v_lshl_add_u32 v{vCS}, v{T+3}, 8, {sT}"); E(f"v_lshl_add_u32 v{vCS}, v{T+4}, 4, v{vCS}")
E(f"v_lshl_add_u32 v{vST}, v{vG}, 1, v{T+1}"); E(f"v_lshlrev_b32 v{vST}, 7, v{vST}")
E(f"v_lshl_add_u32 v149, v{T}, 3, v{vST}")
E(f"s_lshl_b32 {sT}, {sW}, 12"); E(f"v_lshl_add_u32 v{vG3}, v{vG}, 9, {sT}"); E(f"v_lshl_add_u32 v{vG3}, v{vN}, 4, v{vG3}")
E(f"s_lshl_b32 {sT}, {sW}, 11"); E(f"v_lshl_add_u32 v{vAST}, v{T+1}, 10, {sT}"); E(f"v_lshl_add_u32 v{vAST}, v{vG}, 8, v{vAST}")
E(f"s_lshl_b32 {sT}, {sW}, 15"); E(f"v_lshl_add_u32 v151, v{vG}, 12, {sT}"); E(f"v_lshrrev_b32 v152, 2, v{vN}"); E("v_lshl_add_u32 v151, v152, 9, v151")
E(f"v_and_b32 v152, 3, v{vN}"); E("v_lshl_add_u32 v151, v152, 4, v151"); E("v_add_u32 v152, 0x4000, v151")
E(f"s_lshl_b32 {sT}, {sW}, 5"); E(f"v_lshl_add_u32 v{vLW}, v{vG}, 3, {sT}"); E(f"v_lshl_add_u32 v{vLW}, v{vN}, 8, v{vLW}")
E(f"s_lshl_b32 {sT}, {sW}, 10"); E(f"v_add_u32 v150, {sT}, v{vL16}")
lin(sC0,0,[("s4",13),(sW,11)]); E(f"v_lshl_add_u32 v191, v{vN}, 7, {sC0}")
E(f"s_lshl_b32 {sC0}, {sHI}, 10"); setexec(0xFF0000,0); E(f"v_lshl_add_u32 v191, v{vN}, 7, {sC0}"); fullexec()
E(f"v_mov_b32 v{vONE}, 1.0"); lin(sC0,4,[(sW,13)]); E(f"v_lshl_add_u32 v188, v{vLANE}, 7, {sC0}")
E(f"v_and_b32 v{T+5}, 1, v{vN}"); E(f"v_lshlrev_b32 v{T+5}, 4, v{T+5}"); E(f"v_mov_b32 v{T+6}, 0xffff"); E(f"v_lshlrev_b32 v{T+6}, v{T+5}, v{T+6}")
E(f"v_lshrrev_b32 v{T+5}, 1, v{vN}")
for i in range(8):
    E(f"v_cmp_eq_u32 vcc, {i}, v{T+5}"); nop(2); E(f"v_cndmask_b32 v{MP+i}, 0, v{T+6}, vcc")
for i in range(8): E(f"v_and_b32 v{A1+i}, 0x3f803f80, v{MP+i}")
E(f"v_cmp_eq_u32 vcc, 0, v{T+4}"); nop(2)
for i in range(4): E(f"v_cndmask_b32 v{AG+i}, v{A1+4+i}, v{A1+i}, vcc")
stamp2(13)
E("s_waitcnt vmcnt(5)"); E(f"s_cmp_eq_u32 {sW}, 1"); E("s_cbranch_scc1 L_x0p")
E("s_waitcnt vmcnt(3)"); E(f"s_cmp_lg_u32 {sW}, 3"); E("s_cbranch_scc1 L_x0p")
E("s_waitcnt vmcnt(2)"); L("L_x0p"); stamp2(14); E("s_waitcnt lgkmcnt(0)"); E("s_add_u32 s0, s0, 1"); E(f"v_mov_b32 v{vEP}, s0")
uid=[0]
def gld(dst,va,so,off,sel):
    if sel:
        uid[0]+=1
        E(f"v_max3_u32 v190, v{dst}, v{dst+1}, v{dst+2}"); E(f"v_max_u32 v190, v190, v{dst+3}"); E("v_cmp_eq_u32 vcc, -1, v190")
        E("s_mov_b64 exec, vcc"); E(f"s_cbranch_execz L_sl{uid[0]}")
    E(f"buffer_load_dwordx4 {vr(dst,4)}, v{va}, {WS}, {so} offen offset:{off} sc1")
    if sel: L(f"L_sl{uid[0]}"); fullexec()
def poll_end(tag,regs,loads):
    E(f"v_cmp_u_f32 {sP}, v{regs[0]}, v{regs[1]}")
    if len(regs)>2:
        E(f"v_cmp_u_f32 vcc, v{regs[2]}, v{regs[3]}"); E(f"s_or_b64 {sP}, {sP}, vcc")
    E(f"s_cmp_lg_u64 {sP}, 0"); E(f"s_cbranch_scc1 L_rt_{tag}")
    old=sec('rt'); L(f"L_rt_{tag}")
    E(f"s_sub_u32 {sBUD}, {sBUD}, 1"); E(f"s_cmp_lt_i32 {sBUD}, 0"); E(f"s_cbranch_scc1 L_pd_{tag}")
    if int(opts.get('slp',0)): E(f"s_sleep {opts['slp']}")
    loads(True); E("s_waitcnt vmcnt(0)"); E(f"s_branch L_pm_{tag}"); sec(old)
    L(f"L_pd_{tag}")
def ror8(r,n):
    for i in range(n): E(f"v_add_f32_dpp v{r+i}, v{r+i}, v{r+i} row_ror:8 row_mask:0xf bank_mask:0xf")
def g1(tag,key,ng):
    def loads(sel):
        E(f"s_mov_b32 {sT}, {S[key]}")
        for i in range(ng):
            for h in range(2): gld(G+8*i+4*h,vG1,sT,h*256,sel)
            if i<ng-1: E(f"s_add_u32 {sT}, {sT}, 8192")
    loads(False)
    if tag=="o" and JIT==3: l0only("y2"); E("s_barrier"); L("L_skip_y2")
    L(f"L_pm_{tag}")
    for i in range(ng):
        for h in range(2):
            E(f"s_waitcnt vmcnt({2*ng-1-2*i-h})"); mfma(D0+4*h,AG,G+8*i+4*h,None if i==0 else D0+4*h)
    nop(8); poll_end(tag,[D0,D1],loads); ror8(D0,8)
    for i in range(8): E(f"v_add_f32 v{D0+i}, v{D0+i}, v{X+i}")
    for i in range(4): E(f"v_cvt_pk_bf16_f32 v{T+8+i}, v{D0+2*i}, v{D0+2*i+1}")
def x_out(p):
    for i in range(4):
        E(f"v_lshlrev_b32 v{X+2*i}, 16, v{T+8+i}"); E(f"v_and_b32 v{X+2*i+1}, 0xffff0000, v{T+8+i}")
    setexec(0xFF00FF00,0xFF00FF00)
    for i in range(4): E(f"v_mov_b32 v{T+8+i}, 0x3f803f80")
    fullexec()
    E(f"ds_write_b128 v150, {vr(T+8,4)} offset:{OPB[p]}"); E("s_waitcnt lgkmcnt(0)")
def gram(tag,p,key):
    for k in range(4): E(f"ds_read_b128 {vr(G+4*k,4)}, v{vL16} offset:{OPB[p]+k*1024}")
    E("s_waitcnt lgkmcnt(0)")
    for k in range(4): mfma(D0,G+4*k,G+4*k,None if k==0 else D0)
    nop(8)
    for i in range(1,4):
        setexec((1<<i)|(1<<(20+i)),0); E(f"v_mov_b32 v{D0}, v{D0+i}")
    setexec(0x00F0000F,0xFF); E(f"buffer_store_dword v{D0}, v{vSTa}, {WS}, {S[key]} offen sc1"); fullexec()
def ln_stats(r):
    ror8(D2,1); ror8(D3,1)
    E(f"s_mov_b32 {sT}, 0x3a800000")
    E(f"v_mul_f32 v{D2}, {sT}, v{D2}"); E(f"v_mul_f32 v{D3}, {sT}, v{D3}")
    E(f"v_fma_f32 v{D3}, -v{D2}, v{D2}, v{D3}"); E(f"v_max_f32 v{D3}, 0, v{D3}"); E(f"v_add_f32 v{D3}, 0x3727c5ac, v{D3}")
    E(f"v_rsq_f32 v{D3}, v{D3}")
def stat_mfma(r):
    E(f"v_mfma_f32_16x16x4_f32 {vr(D2,4)}, v{vONE}, v{r}, 0"); E(f"v_mfma_f32_16x16x4_f32 {vr(D3,4)}, v{vONE}, v{r+1}, 0")
sec('g1f')
E(f"s_cmp_lt_u32 {sLAY}, 2"); E("s_cbranch_scc1 L_nf"); E(f"s_cmp_lg_u32 {sHI}, {sW}"); E("s_cbranch_scc1 L_fin"); L("L_nf")
g1("f2",'gF2',7)
E(f"s_cmp_lt_u32 {sLAY}, 2"); E("s_cbranch_scc1 L_x0")
setexec(*M8)
E(f"buffer_store_dwordx2 v[{T+8}:{T+9}], v{vOW}, {SOUT}, 0 offen"); E(f"buffer_store_dwordx2 v[{T+10}:{T+11}], v{vOW}, {SOUT}, 0 offen offset:32")
fullexec()
sec('cm'); L("L_x0")
x_out(0)
stamp(1)
l0only("fs"); E(f"s_cmp_lg_u32 {sW}, 1"); E("s_cbranch_scc1 L_skip_fs")
E("s_waitcnt vmcnt(0)"); flag_store(0); stamp2(11); L("L_skip_fs")
E("s_barrier")
E(f"s_cmp_lg_u32 {sW}, 0"); E("s_cbranch_scc1 L_ng0"); gram("q",0,'pQST'); L("L_ng0")
stamp(7)
def flagpoll(tag,lo,hi,T=T,pre=False):
    E(f"s_mov_b32 {sT}, {FLG:#x}"); setexec(lo,hi)
    if pre: E(f"s_branch L_fc{tag}")
    L(f"L_fl{tag}")
    E(f"buffer_load_dword v{T+1}, v{T}, {WS}, {sT} offen sc1"); L(f"L_fc{tag}"); E("s_waitcnt vmcnt(0)")
    E(f"v_cmp_ne_u32 {sP}, v{vEP}, v{T+1}"); E(f"s_cmp_eq_u64 {sP}, 0"); E(f"s_cbranch_scc1 L_fd{tag}")
    E(f"s_sleep {opts.get('fs','2')}")
    E(f"s_sub_u32 {sBUD}, {sBUD}, 1"); E(f"s_cmp_gt_i32 {sBUD}, 0"); E(f"s_cbranch_scc1 L_fl{tag}")
    L(f"L_fd{tag}"); fullexec()
EP=int(opts.get('ep',0))
if EP:
    l0only("fpre"); E(f"s_mov_b32 {sT}, {FLG:#x}"); setexec(0xFFFFFF,0); E(f"buffer_load_dword v192, v191, {WS}, {sT} offen sc1"); fullexec(); L("L_skip_fpre")
E("s_barrier")
l0only("flag")
flagpoll("g",0xFFFFFF,0,191,EP)
L("L_skip_flag")
def l0delay(tag):
    if int(opts.get('l0d',0)): l0only("dl"+tag); E(f"s_sleep {opts['l0d']}"); L("L_skip_dl"+tag)
stamp(2)
CQ=176; CF=180
def ld_q(sel):
    l0only(f"cq0{sel}")
    for p in range(2):
        for i in range(2): gld(G+16+8*p+4*i,vG3,S['gQCS'],p*2048+i*256,sel)
    L(f"L_skip_cq0{sel}")
    E(f"buffer_load_dwordx2 v[{T}:{T+1}], v{vST}, {WS}, {S['gQST']} offen sc1")
    for p in range(2):
        for i in range(2): gld(G+8*p+4*i,151+p,S['gQP'],i*2048,sel)
ld_q(False)
if YB: l0only("y"); E("s_barrier"); L("L_skip_y")
L("L_pm_q")
E("s_waitcnt vmcnt(4)"); stat_mfma(T)
l0only("cq")
for c in range(4): mfma(CQ,A1+4*(c//2),G+16+4*c,None if c==0 else CQ)
L("L_skip_cq")
nop(8); ln_stats(T)
E(f"v_add_f32 v{T+2}, v{D3+1}, v{D2+1}")
for i in range(4): E(f"v_mul_f32 v{D0+i}, -v{D2}, v{CQ+i}")
nop(1)
for c in range(4):
    E(f"s_waitcnt vmcnt({3-c})"); mfma(D0,A1+4*(c//2),G+4*c,D0)
nop(8)
for i in range(4): E(f"v_mul_f32 v{D0+i}, v{D3}, v{D0+i}")
poll_end("q",[D0,T+2],ld_q)
def small_out(p):
    for i in range(2): E(f"v_cvt_pk_bf16_f32 v{T+8+i}, v{D0+2*i}, v{D0+2*i+1}")
    E(f"ds_write_b64 v{vLW}, {vr(T+8,2)} offset:{OPB[p]}"); E("s_waitcnt lgkmcnt(0)")
small_out(1)
stamp(3)
E("s_barrier")
l0only("c1")
E(f"s_cmp_lg_u32 {sW}, 1"); E("s_cbranch_scc1 L_skip_c1"); flag_store(1)
L("L_skip_c1")
E("s_barrier")
E("s_barrier")
l0delay("a")
stamp(8)
def ld_a(sel):
    l0only(f"c3{sel}"); E(f"s_mov_b32 {sT}, {FLG:#x}"); E(f"buffer_load_dword v189, v188, {WS}, {sT} offen sc1"); L(f"L_skip_c3{sel}")
    for i in range(2): E(f"buffer_load_dwordx2 {vr(T+2*i,2)}, v{vAST}, {WS}, {S['gAST']} offen offset:{i*128} sc1")
    for p in range(2):
        for i in range(2): gld(G+8*p+4*i,151+p,S['gAP'],i*2048,sel)
ld_a(False); L("L_pm_a")
E("s_waitcnt vmcnt(4)")
E(f"v_max_f32 v{T+4}, v{T}, v{T+2}"); xrow("v_max_f32",T+4,T+5)
E(f"v_sub_f32 v{T}, v{T}, v{T+4}"); E(f"v_sub_f32 v{T+2}, v{T+2}, v{T+4}"); E(f"v_exp_f32 v{T}, v{T}"); E(f"v_exp_f32 v{T+2}, v{T+2}"); nop(1)
E(f"v_cvt_pk_bf16_f32 v{T}, v{T}, v{T}"); E(f"v_cvt_pk_bf16_f32 v{T+2}, v{T+2}, v{T+2}")
for p in range(2):
    for i in range(2):
        for r in range(4): E(f"v_and_b32 v{AW+8*p+4*i+r}, v{MP+4*p+r}, v{T+2*i}")
E(f"v_and_b32 v{T}, 0xffff0000, v{T}"); E(f"v_and_b32 v{T+2}, 0xffff0000, v{T+2}")
for c in range(4):
    E(f"s_waitcnt vmcnt({3-c})"); mfma(D0,AW+4*c,G+4*c,None if c==0 else D0)
E(f"v_mul_f32 v{T+4}, v{T}, v{T+1}"); E(f"v_fmac_f32 v{T+4}, v{T+2}, v{T+3}"); xrow("v_add_f32",T+4,T+5)
E(f"v_rcp_f32 v{T+4}, v{T+4}"); nop(1)
E(f"v_readlane_b32 {sC0}, v{T+4}, 0"); E(f"v_readlane_b32 {sC1}, v{T+4}, 8"); nop(2)
E(f"v_mov_b32 v{T+4}, {sC1}"); setexec(0xFFFFFFFF,0); E(f"v_mov_b32 v{T+4}, {sC0}"); fullexec()
for i in range(4): E(f"v_mul_f32 v{D0+i}, v{T+4}, v{D0+i}")
poll_end("a",[D0,D0+1],ld_a)
small_out(2)
stamp(4)
E("s_barrier")
l0only("c2"); flagpoll("a",0xFFFFFFFF,0xFFFFFFFF,188,True); L("L_skip_c2")
E("s_barrier")
E(f"s_add_u32 {sT}, s2, {sW}"); E(f"s_add_u32 {sT}, {sT}, {sLAY}"); E(f"s_cmp_lg_u32 {sT}, 0"); E("s_cbranch_scc1 L_nep")
E(f"s_mov_b32 {sT}, {EPO:#x}"); setexec(1,0); E(f"buffer_store_dword v{vEP}, off, {WS}, {sT} sc1"); fullexec()
L("L_nep")
l0delay("o")
g1("o",'gOP',8)
x_out(3)
stamp(5)
E("s_barrier")
E(f"s_cmp_lg_u32 {sW}, 0"); E("s_cbranch_scc1 L_ng1"); E(f"s_cmp_eq_u32 {sA1}, 0"); E("s_cbranch_scc1 L_ng1"); gram("f",3,'pF1ST'); L("L_ng1")
E("s_barrier")
if SC==1 or JIT: l0delay("f")
E(f"s_cmp_eq_u32 {sA2}, 0"); E("s_cbranch_scc1 L_nog2")
E0,E1=AW,AW+4
def ld_h(sel):
    l0only(f"cf0{sel}")
    for i in range(2):
        for h in range(2): gld(G+16+8*i+4*h,vCS,S['gF1CS'],i*1024+h*32,sel)
    L(f"L_skip_cf0{sel}")
    E(f"buffer_load_dwordx2 v[{T}:{T+1}], v149, {WS}, {S['gF1ST']} offen sc1")
    E(f"s_add_u32 {sT}, {S['gF1']}, 8192")
    for i in range(2):
        for h in range(2): gld(G+8*i+4*h,vG1,S['gF1'] if i==0 else sT,h*256,sel)
ld_h(False); L("L_pm_h")
E("s_waitcnt vmcnt(4)"); stat_mfma(T)
l0only("cf")
for c in range(4): mfma(CF+4*(c%2),AG,G+16+4*c,None if c<2 else CF+4*(c%2))
L("L_skip_cf")
nop(8); ln_stats(T)
E(f"v_add_f32 v{T+2}, v{D3+1}, v{D2+1}")
for i in range(8): E(f"v_mul_f32 v{D0+i}, -v{D2}, v{CF+i}")
nop(1)
for c in range(4):
    E(f"s_waitcnt vmcnt({3-c})"); mfma(D0+4*(c%2),AG,G+4*c,D0+4*(c%2))
nop(8)
poll_end("h",[D0,D1,T+2,T+2],ld_h)
ror8(D0,8)
E(f"s_mov_b32 {sT}, 0xbfb8aa3b")
for i in range(8): E(f"v_mul_f32 v{D0+i}, v{D3}, v{D0+i}")
for i in range(8): E(f"v_mul_f32 v{E0+i}, {sT}, v{D0+i}")
for i in range(8): E(f"v_exp_f32 v{E0+i}, v{E0+i}")
for i in range(8): E(f"v_add_f32 v{E0+i}, 1.0, v{E0+i}")
for i in range(8): E(f"v_rcp_f32 v{E0+i}, v{E0+i}")
for i in range(8): E(f"v_mul_f32 v{D0+i}, v{E0+i}, v{D0+i}")
for i in range(4): E(f"v_cvt_pk_bf16_f32 v{T+8+i}, v{D0+2*i}, v{D0+2*i+1}")
E(f"ds_write_b128 v150, {vr(T+8,4)} offset:{OPB[4]}"); E("s_waitcnt lgkmcnt(0)")
L("L_nog2")
stamp(6)
E("s_barrier")
E("s_barrier")
bump(['pQST','pF1ST','gF2','gOP','gQP','gQCS','gQST','gAP','gAST','gF1','gF1CS','gF1ST'])
E(f"s_add_u32 {sLAY}, {sLAY}, 1")
sec('fin'); L("L_fin")
if STAMP:
    E(f"s_mov_b32 {sLAY}, 1"); stamp(9)
    E(f"s_mov_b32 s{STS+9}, {sBUD}")
    E("s_lshl_b32 s4, s2, 3"); E("s_add_u32 s4, s4, s3"); E("s_lshl_b32 s4, s4, 7"); E(f"s_add_u32 s4, s4, {STB_WS:#x}")
    E("v_mov_b32 v1, 0"); setexec(1,0)
    for i in range(20):
        E(f"v_mov_b32 v2, s{STS+i}"); E(f"buffer_store_dword v2, v1, {WS}, s4 offen offset:{4*i}"); nop(2)
    E("s_waitcnt vmcnt(0)")
L("L_end")
E("s_endpgm")
for k in ('cm','g1f','fin','wt','rt'): out.extend(secs[k])
out.append("L_codeend:")
out.append(""".section .rodata,"a"
.p2align 6
.amdhsa_kernel %s_kernel
  .amdhsa_next_free_vgpr 256
  .amdhsa_next_free_sgpr 102
  .amdhsa_accum_offset 256
  .amdhsa_group_segment_fixed_size 0
  .amdhsa_kernarg_size 88
  .amdhsa_user_sgpr_count 2
  .amdhsa_user_sgpr_kernarg_segment_ptr 1
  .amdhsa_system_sgpr_workgroup_id_x 1
.end_amdhsa_kernel"""%NAME)
open(sys.argv[1],"w").write("\n".join(out)+"\n")
```
